```python
import torch

def _softmax(x, axis=-1):
    return torch.softmax(x, dim=axis)
def _gelu(x):
    return torch.nn.functional.gelu(x, approximate="tanh")
def _silu(x):
    return torch.nn.functional.silu(x)
def _sigmoid(x):
    return torch.sigmoid(x)
def _layernorm(x, axis=-1, eps=1e-5):
    m = x.mean(dim=axis, keepdim=True)
    v = x.var(dim=axis, keepdim=True, unbiased=False)
    return (x - m) / torch.sqrt(v + eps)
def _scatter_add(tgt, idx, src, axis=0):
    return tgt.clone().index_add_(axis, idx, src)
def _segment_sum(src, seg, n):
    out = torch.zeros((n,) + src.shape[1:], dtype=src.dtype)
    return out.index_add_(0, seg, src)
def _pad(x, pw):
    flat = tuple(v for pair in reversed(pw) for v in pair)
    return torch.nn.functional.pad(x, flat)

kernel_name = 'parallel_sum__ssm_conv_h3__glu_gated_reglu__prompt'

def setup_inputs():

    _w = (lambda a: (lambda t: t.to(torch.bfloat16) if t.is_floating_point() else t)(torch.as_tensor(a)))
    def _A_setup():
        B, S, D = 1, 2048, 512
        ks = 4
        return {
            "q": _w((lambda *s: torch.randn(*s, dtype=torch.bfloat16) * 0.05)(B, S, D)),
            "k": _w((lambda *s: torch.randn(*s, dtype=torch.bfloat16) * 0.2)(B, S, D)),
            "v": _w((lambda *s: torch.randn(*s, dtype=torch.bfloat16) * 0.2)(B, S, D)),
            "shift_k": _w((lambda *s: torch.randn(*s, dtype=torch.bfloat16) * 0.2)(D, ks) * 0.5),
            "ssm_k": _w((lambda *s: torch.randn(*s, dtype=torch.bfloat16) * 0.4)(D, S) * (1.0 / S ** 0.5)),
            "ssm_D": _w((lambda *s: torch.randn(*s, dtype=torch.bfloat16) * 0.2)(D)),
        }
    _A_in = _A_setup()

    def _B_setup():
        B, S, D, F = 1, 2048, 512, 1792
        return {
            "x": _w((lambda *s: torch.randn(*s, dtype=torch.bfloat16) * 0.05)(B, S, D)),
            "W_gate": _w((lambda *s: torch.randn(*s, dtype=torch.bfloat16) * 0.2)(D, F) * (2.0 / D) ** 0.5),
            "W_up": _w((lambda *s: torch.randn(*s, dtype=torch.bfloat16) * 0.2)(D, F) * (2.0 / D) ** 0.5),
            "W_down": _w((lambda *s: torch.randn(*s, dtype=torch.bfloat16) * 0.2)(F, D) * (1.0 / F) ** 0.5),
        }
    _B_in = _B_setup()

    return {
        "A_q": _A_in["q"],
        "A_k": _A_in["k"],
        "A_v": _A_in["v"],
        "A_shift_k": _A_in["shift_k"],
        "A_ssm_k": _A_in["ssm_k"],
        "A_ssm_D": _A_in["ssm_D"],
        "B_x": _B_in["x"],
        "B_W_gate": _B_in["W_gate"],
        "B_W_up": _B_in["W_up"],
        "B_W_down": _B_in["W_down"],
    }

def reference(A_q, A_k, A_v, A_shift_k, A_ssm_k, A_ssm_D, B_x, B_W_gate, B_W_up, B_W_down):
    def _A_ref(q, k, v, shift_k, ssm_k, ssm_D):
        B, S, D = q.shape
        ks = shift_k.shape[-1]
        k_pad = _pad(k, ((0, 0), (ks - 1, 0), (0, 0)))
        k_shift = torch.zeros_like(k)
        for t in range(ks):
            k_shift = k_shift + k_pad[:, t:t + S, :] * shift_k[:, ks - 1 - t][None, None, :]
        kv = k_shift * v
        L = 2 * S
        kv_pad = _pad(kv, ((0, 0), (0, S), (0, 0)))
        kf_pad = _pad(ssm_k, ((0, 0), (0, S)))
        kv_f = (lambda x, axes=(-2,-1): torch.fft.rfft2(x.float(), dim=axes))(kv_pad[:, None, :, :], axes=(1, 2))
        kf_f = (lambda x, axes=(-2,-1): torch.fft.rfft2(x.float(), dim=axes))(kf_pad[:, None, :], axes=(1, 2))
        kf_f = (lambda x, *d: x.permute(*d))(kf_f, 1, 2, 0)
        y_f = kv_f * kf_f[None, :, :, :]
        y = (lambda x, s, axes=(-2,-1): torch.fft.irfft2(x, s=s, dim=axes).to(torch.bfloat16))(y_f, (1, L), axes=(1, 2))[:, 0, :S, :]
        y = y + kv * ssm_D[None, None, :]
        return q * y

    def _B_ref(x, W_gate, W_up, W_down):
        gate = torch.einsum("bsd,df->bsf", x, W_gate)
        up = torch.einsum("bsd,df->bsf", x, W_up)
        gate = gate * (lambda x, dt: x.to(dt))(gate > 0, gate.dtype)
        h = gate * up
        return torch.einsum("bsf,fd->bsd", h, W_down)

    x = A_q
    xn = _layernorm(x, axis=-1)
    return x + _A_ref(xn, A_k, A_v, A_shift_k, A_ssm_k, A_ssm_D) + _B_ref(xn, B_W_gate, B_W_up, B_W_down)
```

```python
import re

class KB:
    def __init__(self):
        self.lines = []
        self.vm = []
        self.lg = []
        self.nlabel = 0
    def e(self, s):
        self.lines.append("    " + s)
    def c(self, s):
        self.lines.append("    ; " + s)
    def label(self, name):
        self.lines.append(name + ":")
    def newlabel(self, base):
        self.nlabel += 1
        return f"L_{base}_{self.nlabel}"
    def vmem(self, s, tag=None):
        self.e(s); self.vm.append(tag)
    def lds(self, s, tag=None):
        self.e(s); self.lg.append(tag)
    def _n_after(self, lst, tags):
        if not isinstance(tags, (list, set)): tags = [tags]
        idx = -1
        for i, t in enumerate(lst):
            if t in tags: idx = i
        if idx < 0: return None
        return len(lst) - 1 - idx
    def wait(self, vm=None, lg=None):
        parts = []
        if vm is not None:
            n = 0 if vm == 'all' else self._n_after(self.vm, vm)
            if n is not None and (self.vm or vm == 'all'):
                n = min(n, 63)
                parts.append(f"vmcnt({n})")
                self.vm = self.vm[len(self.vm)-n:] if n else []
        if lg is not None:
            n = 0 if lg == 'all' else self._n_after(self.lg, lg)
            if n is not None and (self.lg or lg == 'all'):
                n = min(n, 15)
                parts.append(f"lgkmcnt({n})")
                self.lg = self.lg[len(self.lg)-n:] if n else []
        if parts:
            self.e("s_waitcnt " + " ".join(parts))
    def pending_vm(self, tag):
        return tag in self.vm
    def text(self):
        return "\n".join(self.lines)

REG = re.compile(r"\b([vas])(\d+)\b|\b([vas])\[(\d+):(\d+)\]")
def regs(tok):
    out = set()
    for m in REG.finditer(tok):
        if m.group(1): out.add((m.group(1), int(m.group(2))))
        else:
            for i in range(int(m.group(4)), int(m.group(5))+1): out.add((m.group(3), i))
    if re.search(r"\bvcc\b", tok): out |= {('s', 106), ('s', 107)}
    if re.search(r"\bm0\b", tok): out.add(('s', 124))
    if re.search(r"\bexec\b", tok): out |= {('s', 126), ('s', 127)}
    return out

TRANS = ("v_exp_", "v_log_", "v_rcp_", "v_rsq_", "v_sqrt_", "v_sin_", "v_cos_")
def parse(line):
    s = line.split(";")[0].strip()
    if not s or s.endswith(":") or s.startswith("."): return None
    parts = s.split(None, 1)
    op = parts[0]
    ops = [o.strip() for o in parts[1].split(",")] if len(parts) > 1 else []
    d = dict(op=op, text=s, w=set(), r=set(), kind='other', A=set(), B=set(), C=set(), sdata=set())
    if op.startswith("v_mfma"):
        d['kind'] = 'mfma'; d['w'] = regs(ops[0]); d['A'] = regs(ops[1]); d['B'] = regs(ops[2]); d['C'] = regs(ops[3])
        d['r'] = d['A'] | d['B'] | d['C']
        d['passes'] = 8 if '32x32x16' in op else 4
        d['dtext'] = ops[0]; d['ctext'] = ops[3].split()[0]
    elif op.startswith("v_"):
        d['kind'] = 'valu'
        if op.startswith("v_cmp"):
            d['w'] = regs(ops[0]); d['r'] = set().union(*[regs(o) for o in ops[1:]])
        elif op.startswith("v_permlane") and 'swap' in op:
            d['w'] = regs(ops[0]) | regs(ops[1]); d['r'] = set(d['w'])
        elif op.startswith(("v_add_co", "v_sub_co", "v_addc_co", "v_subb_co")):
            d['w'] = regs(ops[0]) | regs(ops[1]); d['r'] = set().union(*[regs(o) for o in ops[2:]])
        else:
            d['w'] = regs(ops[0]); d['r'] = set().union(*[regs(o) for o in ops[1:]]) if len(ops) > 1 else set()
            if op.startswith(("v_fmac", "v_dot2c", "v_pk_fmac")) or '_dpp' in op: d['r'] |= d['w']
    elif op.startswith("buffer_") or op.startswith("global_"):
        d['kind'] = 'vmem'
        if 'store' in op or 'atomic' in op:
            if op.startswith("buffer_"):
                d['sdata'] = regs(ops[0])
            else:
                d['sdata'] = regs(ops[1])
            d['r'] = set().union(*[regs(o) for o in ops])
            d['wide'] = 'x4' in op or 'x3' in op
        elif re.search(r"\blds\b", s):
            d['r'] = set().union(*[regs(o) for o in ops]) | {('s', 124)}; d['dma'] = True
        elif op in ("buffer_inv", "buffer_wbl2"):
            pass
        else:
            d['w'] = regs(ops[0]); d['r'] = set().union(*[regs(o) for o in ops[1:]])
    elif op.startswith("ds_"):
        d['kind'] = 'ds'
        if 'write' in op: d['r'] = set().union(*[regs(o) for o in ops])
        else:
            d['w'] = regs(ops[0]); d['r'] = set().union(*[regs(o) for o in ops[1:]])
    elif op.startswith("s_"):
        d['kind'] = 'salu'
        if op in ("s_nop",): d['nop'] = int(ops[0], 0) + 1
        elif op.startswith(("s_cmp", "s_cbranch", "s_branch", "s_waitcnt", "s_barrier", "s_sleep", "s_endpgm", "s_setprio")):
            d['r'] = set().union(*[regs(o) for o in ops]) if ops else set()
        else:
            d['w'] = regs(ops[0]) if ops else set(); d['r'] = set().union(*[regs(o) for o in ops[1:]]) if len(ops) > 1 else set()
    return d

def check(text):
    ins = []
    for ln, line in enumerate(text.split("\n"), 1):
        d = parse(line)
        if d: d['ln'] = ln; ins.append(d)
    errs = []
    for i, c in enumerate(ins):
        dist = 0
        for j in range(i-1, max(-1, i-24), -1):
            p = ins[j]
            need = 0; why = ""
            vw = {x for x in p['w'] if x[0] in 'va'}; sw = {x for x in p['w'] if x[0] == 's'}
            if p['kind'] == 'valu':
                if c['kind'] == 'mfma' and vw & c['r']: need, why = 2, "valu->mfma"
                if c['kind'] == 'vmem' and sw & c['r']: need, why = 5, "valu sgpr->vmem"
                if c['kind'] == 'valu' and sw & c['r']: need, why = max(need, 2), "valu sgpr->valu"
                if c['op'].startswith(("v_readlane", "v_readfirstlane")) and vw & c['r']: need, why = max(need, 1), "valu->readlane"
                if (c['op'].startswith("v_permlane") or '_dpp' in c['op']) and vw & c['r']: need, why = max(need, 2), "valu->permlane/dpp"
                if p['op'].startswith(TRANS) and c['kind'] in ('valu',) and vw & c['r']: need, why = max(need, 1), "trans->valu"
                if p['op'].startswith("v_dot") and c['kind'] in ('valu', 'mfma', 'vmem', 'ds') and c['op'] != p['op'] and vw & (c['r'] | c['w']): need, why = max(need, 3), "dot->other"
            if p['kind'] == 'salu' and ('s', 124) in p['w'] and c.get('dma'): need, why = 1, "m0->dma"
            if p['kind'] == 'mfma':
                big = 12 if p['passes'] == 8 else 8
                if c['kind'] == 'mfma':
                    if p['w'] & (c['A'] | c['B']): need, why = big, "mfma D->A/B"
                    elif p['w'] & c['C']:
                        if p['dtext'] == c['ctext'] and p['passes'] == c['passes']: need = 0
                        else: need, why = (10 if p['passes'] == 8 else 6), "mfma D->C overlap"
                elif c['kind'] in ('valu', 'vmem', 'ds'):
                    if p['w'] & (c['r'] | c['w']): need, why = big, "mfma D->valu/mem"
                    if c['kind'] == 'valu' and p['C'] & c['w']: need, why = max(need, 7 if p['passes'] == 8 else 3), "mfma C WAR"
            if p['kind'] == 'vmem' and p.get('wide') and p['sdata'] & c['w']:
                need, why = max(need, 2 if c['kind'] == 'valu' else 1), "store data WAR"
            if need > dist:
                errs.append(f"line {c['ln']}: '{c['text']}' needs {need} states after line {p['ln']} '{p['text']}' ({why}), has {dist}")
            dist += p.get('nop', 1)
            if dist >= 20: break
    return errs
```

```python
import sys
from kb import KB, check

NAME = "parallel_sum__ssm_conv_h3__glu_gated_reglu__prompt"
S, D, F = 2048, 512, 1792
GW = 0x0
HF = 0x80000
ST_OFF = 0x10000
WF_OFF = 0x30000
TS_OFF = 0x40000
UT_OFF = 1 << 20
YT_OFF = 4 << 20
XB_OFF = 7 << 20
H_OFF = 11 << 20
WS_SIZE = 32 << 20
TAG_INC = 0x9E3779B9
XS = [0, 16384, 131072]
WSL = [32768, 65536, 98304]
MISC = 147456
HC = 98304; HC_CH = 16656; HC_BASE = [0, 261*16, 521*16, 781*16]
UC = 32768; UC_CP = 4576; UC_CH = 2*UC_CP
PB = 65536
EXA, EXB = 0, 49152
YT_L = 98304
ZSLOT = 132096
LDS_SIZE = 163840
sWAVE, sXCD, sIDX, sMT, sNT, sTAG, sMASK = 3, 44, 45, 46, 47, 48, 49
sT0, sT1, sT2, sT3 = 50, 51, 52, 53
sW4K, sW8K, sW2K = 54, 55, 56
sXO, sWO, sDO = 57, 58, 59
sDD, sCP, sDT, sCNT = 60, 61, 62, 63
sA0, sA1, sA2, sA3, sA4, sA5, sA6, sA7 = range(64, 72)
sXT, sOKU, sOKC, sOKH = 72, 73, 74, 75
KP = 76
STAMP0 = 76
X, W, WD, WS, KK, VV, HK, OUT, SK = [f"s[{a}:{a+3}]" for a in (8, 12, 16, 20, 24, 28, 32, 36, 40)]
vL = 1; vFLAG = 2; vTAG = 3; vL16 = 4
T = list(range(5, 16))
XD, WDv, XR, XR2, WR, WR2 = 16, 20, 24, 28, 32, 34
WV, WT = 36, 38
vYL = 40; AU, AH = 41, 42; vP = 43; vMEAN, vRSTD = 44, 45; WT0 = 46
XK = 216
UR = 48
FREE = 60
WFR = 112; XFR = 224; ACC = 128

def srd(k, base, ptr, size):
    k.e(f"s_mov_b32 s{base}, s{ptr}"); k.e(f"s_mov_b32 s{base+1}, s{ptr+1}")
    k.e(f"s_mov_b32 s{base+2}, {size}"); k.e(f"s_mov_b32 s{base+3}, 0x20000")
pr = lambda x: f"v[{x}:{x+1}]"
q4 = lambda x: f"v[{x}:{x+3}]"

class Gen:
    def __init__(self, stamps=False, P=None):
        self.k = KB(); self.stamps = stamps; self.nst = 0
        self.tail = []
        self.P = dict(wd_lat=1100, poll_lat=500, ld_lat=700, cap=3, prep_start=100, prep_lat=1300, ut_time=6700,
                      uld=8200, corr_lat=1100, hpoll=1700, yld=2300, h_drain=1300, outsc=0, xrecv=3300, xs_at=3)
        if P: self.P.update(P)
        self.reset_sched()
    def reset_sched(self):
        self.tasks = []; self.now = 0; self.events = set(); self.m0 = None
    def add(self, name, gen, prio=5):
        t = dict(name=name, g=gen, prio=prio, wake=None, done=False)
        self.tasks.append(t); self.tasks.sort(key=lambda t: t['prio']); return t
    def _ready(self, t):
        w = t['wake']
        if w is None: return True
        if w[0] == 't': return self.now >= w[1]
        return w[1] in self.events
    def _step(self, t):
        t['wake'] = None
        n0 = len(self.k.lines)
        try: r = next(t['g'])
        except StopIteration:
            t['done'] = True; return len(self.k.lines) - n0
        if isinstance(r, tuple):
            t['wake'] = ('t', self.now + r[1]) if r[0] == 'dt' else r
        return len(self.k.lines) - n0
    def fill(self, cap, dt):
        self.now += dt
        while cap > 0:
            for t in self.tasks:
                if not t['done'] and self._ready(t):
                    cap -= self._step(t); break
            else: break
    def drain(self, *names):
        for t in self.tasks:
            if t['name'] in names:
                while not t['done']:
                    w = t['wake']
                    assert not (w and w[0] == 'e' and w[1] not in self.events), (t['name'], w)
                    self._step(t)
    def done(self, name):
        return all(t['done'] for t in self.tasks if t['name'] == name)
    def after(self, evt, gen):
        yield ('e', evt)
        yield from gen
    def at(self, t, gen):
        yield ('t', t)
        yield from gen
    def seq(self, *ins):
        for s in ins:
            self.k.e(s); yield
    def setm0(self, sreg, off):
        if self.m0 != (sreg, off):
            self.k.e(f"s_add_u32 m0, s{sreg}, {off}"); self.m0 = (sreg, off); return True
        return False
    def stamp(self, grp='main'):
        if not self.stamps or grp != self.P.get('sgrp', 'main'): return
        self.k.e(f"s_memtime s[{STAMP0+2*self.nst}:{STAMP0+1+2*self.nst}]"); self.nst += 1
        assert self.nst <= 12
    def cmpall(self, e, checks):
        e(f"v_cmp_ne_u32 vcc, s{sTAG}, v{checks[0]}")
        for r in checks[1:]:
            e(f"v_cmp_ne_u32 s[{sT2}:{sT3}], s{sTAG}, v{r}"); e(f"s_or_b64 vcc, vcc, s[{sT2}:{sT3}]")
    def spin(self, e, lab, name, loads, checks):
        lp = self.k.newlabel("lp_" + name); ok = self.k.newlabel("ok_" + name)
        e(f"s_mov_b32 s{sCNT}, 0"); lab(lp)
        for l in loads: e(l)
        e("s_waitcnt vmcnt(0)")
        self.cmpall(e, checks)
        e(f"s_cbranch_vccz {ok}")
        e("s_sleep 1")
        e(f"s_add_u32 s{sCNT}, s{sCNT}, 1"); e(f"s_cmp_lt_u32 s{sCNT}, 0x10000"); e(f"s_cbranch_scc1 {lp}")
        lab(ok)
    def ool(self, name, cond_branch, body):
        k = self.k
        slow = k.newlabel("slow_" + name); back = k.newlabel("back_" + name)
        k.e(f"{cond_branch} {slow}"); k.label(back)
        t = self.tail
        e = lambda s: t.append("    " + s); lab = lambda s: t.append(s + ":")
        lab(slow); body(e, lab); e(f"s_branch {back}")
    def retry(self, name, loads, checks):
        self.cmpall(self.k.e, checks)
        self.ool(name, "s_cbranch_vccnz", lambda e, lab: self.spin(e, lab, name, loads, checks))
    def record_ok(self, checks, sok):
        self.cmpall(self.k.e, checks)
        self.k.e(f"s_or_b32 s{sok}, vcc_lo, vcc_hi")
    def redo(self, name, sok, body):
        self.k.e(f"s_cmp_lg_u32 s{sok}, 0")
        self.ool(name, "s_cbranch_scc1", body)
    def flag(self, soff):
        self.k.vmem(f"buffer_store_dword v{vTAG}, v{vFLAG}, {WS}, s{soff} offen sc1", 'flag')

    def setup_pre(self):
        k = self.k
        if self.stamps:
            k.e("s_memrealtime s[4:5]"); k.e("s_memtime s[6:7]")
        k.e("s_cmp_ge_u32 s2, 256"); k.e("s_cbranch_scc1 L_end")
        k.e(f"s_load_dwordx16 s[{KP}:{KP+15}], s[0:1], 0")
        k.e(f"s_load_dwordx8 s[{KP+16}:{KP+23}], s[0:1], 64")
        k.e(f"s_load_dwordx2 s[{KP+24}:{KP+25}], s[0:1], 96")
        k.e(f"v_and_b32 v{vL}, 63, v0")
        k.e(f"v_lshrrev_b32 v{T[0]}, 6, v0")
        k.e(f"v_lshlrev_b32 v{vL16}, 4, v{vL}")
        k.e(f"v_readfirstlane_b32 s{sWAVE}, v{T[0]}")
        k.e(f"s_and_b32 s{sXCD}, s2, 7"); k.e(f"s_lshr_b32 s{sIDX}, s2, 3")
        k.e(f"s_mov_b32 s{sMASK}, 0xffff0000")
        k.e(f"s_lshr_b32 s{sMT}, s{sXCD}, 1"); k.e(f"s_lshl_b32 s{sMT}, s{sMT}, 2")
        k.e(f"s_and_b32 s{sT0}, s{sIDX}, 3"); k.e(f"s_add_u32 s{sMT}, s{sMT}, s{sT0}")
        k.e(f"s_and_b32 s{sNT}, s{sXCD}, 1"); k.e(f"s_mul_i32 s{sNT}, s{sNT}, 7")
        k.e(f"s_lshr_b32 s{sDT}, s{sIDX}, 2"); k.e(f"s_add_u32 s{sNT}, s{sNT}, s{sDT}")
        k.e(f"s_lshl_b32 s{sCP}, s{sXCD}, 5"); k.e(f"s_add_u32 s{sCP}, s{sCP}, s{sIDX}")
        k.e(f"s_lshl_b32 s{sW4K}, s{sWAVE}, 12"); k.e(f"s_lshl_b32 s{sW8K}, s{sWAVE}, 13"); k.e(f"s_lshl_b32 s{sW2K}, s{sWAVE}, 11")
    def setup_srd1(self):
        k = self.k
        k.e("s_waitcnt lgkmcnt(0)")
        srd(k, 8, KP, S*D*2)
        k.e(f"s_cmp_ge_u32 s{sWAVE}, 2")
        k.e(f"s_cselect_b32 s12, s{KP+16}, s{KP+14}"); k.e(f"s_cselect_b32 s13, s{KP+17}, s{KP+15}")
        k.e(f"s_mov_b32 s14, {D*F*2}"); k.e("s_mov_b32 s15, 0x20000")
    def setup_srd2(self):
        k = self.k
        k.e(f"s_load_dword s{sTAG}, s[{KP+24}:{KP+25}], {GW}")
        k.e(f"s_lshl_b32 s{sT0}, s{sCP}, 2")
        k.e(f"s_load_dword s{sDD}, s[{KP+10}:{KP+11}], s{sT0}")
        srd(k, 24, KP+2, S*D*2); srd(k, 28, KP+4, S*D*2); srd(k, 40, KP+6, D*4*2)
        srd(k, 16, KP+18, F*D*2); srd(k, 20, KP+24, WS_SIZE); srd(k, 32, KP+8, D*S*2); srd(k, 36, KP+20, S*D*2)
        k.e(f"v_lshrrev_b32 v{vFLAG}, 5, v{vL}"); k.e(f"v_lshlrev_b32 v{vFLAG}, 30, v{vFLAG}")
        k.e(f"v_lshl_add_u32 v{vFLAG}, v{vL}, 2, v{vFLAG}")

    def tag_ready(self):
        k = self.k
        k.e("s_waitcnt lgkmcnt(0)"); k.lg = []
        k.e(f"s_add_u32 s{sTAG}, s{sTAG}, {TAG_INC}")
        k.e(f"v_mov_b32 v{vTAG}, s{sTAG}")

    def prep_addr(self, PAD):
        k = self.k; e = k.e
        a, b, c, t = T[0], T[1], T[2], T[3]
        self.PAD = PAD; SP = MISC + 8192
        aw, bw, ar, bg, tr = range(PAD, PAD+5)
        e(f"s_lshl_b32 s{sT0}, s{sWAVE}, 1"); e(f"s_sub_u32 s{sT0}, 7, s{sT0}")
        e(f"v_lshrrev_b32 v{a}, 5, v{vL}"); e(f"v_sub_u32 v{aw}, s{sT0}, v{a}"); e(f"v_and_b32 v{t}, 7, v{vL}"); e(f"v_xor_b32 v{aw}, v{aw}, v{t}")
        e(f"v_lshlrev_b32 v{ar}, 4, v{t}")
        e(f"v_and_b32 v{t}, 31, v{vL}"); e(f"v_lshl_add_u32 v{bw}, v{t}, 3, v{aw}"); e(f"v_lshlrev_b32 v{aw}, 4, v{aw}")
        e(f"v_lshl_add_u32 v{aw}, v{t}, 8, v{aw}"); e(f"v_add_u32 v{aw}, {MISC}, v{aw}"); e(f"v_lshlrev_b32 v{bw}, 2, v{bw}"); e(f"v_add_u32 v{bw}, {SP}, v{bw}")
        e(f"v_lshrrev_b32 v{b}, 3, v0"); e(f"v_lshl_add_u32 v{ar}, v{b}, 8, v{ar}"); e(f"v_add_u32 v{ar}, {MISC}, v{ar}")
        e(f"v_xor_b32 v{bg}, v{b}, v0"); e(f"v_and_b32 v{bg}, 7, v{bg}"); e(f"v_lshlrev_b32 v{bg}, 4, v{bg}")
        e(f"v_mul_u32_u24 v{b}, 12288, v{b}"); e(f"v_add_u32 v{bg}, v{bg}, v{b}"); e(f"v_lshlrev_b32 v{tr}, 2, v0"); e(f"v_add_u32 v{tr}, {SP}, v{tr}")
        e(f"s_lshl_b32 s{sT0}, s{sIDX}, 16"); e(f"s_lshl_b32 s{sT1}, s{sWAVE}, 14"); e(f"s_add_u32 s{sT0}, s{sT0}, s{sT1}")
        e(f"s_lshl_b32 s{sT1}, s{sXCD}, 7"); e(f"s_add_u32 s{sT0}, s{sT0}, s{sT1}"); e(f"s_lshl_b32 s{sA1}, s{sXCD}, 9")
        e(f"v_lshlrev_b32 v{a}, 13, v{a}"); e(f"v_lshl_add_u32 v{a}, v{t}, 2, v{a}"); e(f"v_add_u32 v{a}, s{sT0}, v{a}")
        e(f"v_add_u32 v{b}, 0x1000, v{a}"); e(f"v_subrev_u32 v{c}, 0x1000, v{a}"); e(f"v_lshlrev_b32 v{t}, 4, v{t}")
        e(f"s_mul_i32 s{sA0}, s{sXCD}, {32*12288}"); e(f"s_mul_i32 s{sT1}, s{sIDX}, 384")
        e(f"s_sub_u32 s{sA0}, s{sA0}, s{sT1}"); e(f"s_add_u32 s{sA0}, s{sA0}, {UT_OFF + 31*384}")
    def prep_loads(self, P, pace=0):
        k = self.k
        a, b, c, t = T[0], T[1], T[2], T[3]
        k.vmem(f"buffer_load_dwordx4 {q4(P+22)}, v{t}, {SK}, s{sA1} offen", 'prep'); yield ('dt', pace)
        for r in range(12):
            k.vmem(f"buffer_load_dword v{P+r}, v{(c, a, b)[r // 4]}, {KK}, 0 offen offset:{(r % 4)*1024}", 'prep'); yield ('dt', pace)
        for r in range(9):
            rr = r + 3
            k.vmem(f"buffer_load_dword v{P+12+r}, v{(c, a, b)[rr // 4]}, {VV}, 0 offen offset:{(rr % 4)*1024}", 'prep'); yield ('dt', pace)
    def touch(self, dst):
        k = self.k
        k.e(f"s_mul_i32 s{sA3}, s2, 7168"); k.e(f"s_add_u32 s{sA3}, s{sA3}, s{sW2K}"); yield
        for z in range(2):
            k.vmem(f"buffer_load_dwordx4 {q4(dst)}, v{vL16}, {WD}, s{sA3} offen offset:{1024*z}", 'touch'); yield
        k.e(f"s_lshl_b32 s{sA3}, s{sCP}, 13"); k.e(f"s_add_u32 s{sA3}, s{sA3}, s{sW2K}"); yield
        for z in range(2):
            k.vmem(f"buffer_load_dwordx4 {q4(dst)}, v{vL16}, {HK}, s{sA3} offen offset:{1024*z}", 'touch'); yield
    def prep_full(self, P, evt):
        yield from self.prep_loads(P, 30)
        if self.P.get('touch', 1): yield from self.touch(UR)
        yield ('dt', self.P['prep_lat'])
        yield from self.prep_task(P, evt)
    def prep_task(self, P, bar_evt):
        k = self.k
        XS_, U, WP, KW, O = P+21, P+22, P+26, P+34, P+42
        a, t = T[4], T[5]
        k.wait(vm='prep')
        for j in range(4):
            for ch in range(2):
                src = P+22 + 2*ch + (j >> 1)
                if j & 1: k.e(f"v_and_b32 v{WP+2*j+ch}, s{sMASK}, v{src}")
                else: k.e(f"v_lshlrev_b32 v{WP+2*j+ch}, 16, v{src}")
                yield
        def unpk(r):
            d = KW + 2*(r % 4)
            yield from self.seq(f"v_lshlrev_b32 v{d}, 16, v{P+r}", f"v_and_b32 v{d+1}, s{sMASK}, v{P+r}")
        for r in range(3): yield from unpk(r)
        for r9 in range(9):
            yield from unpk(r9+3)
            r = r9 - 1
            u = U + 2*(r & 1)
            for j in range(4):
                kr = KW + 2*((r9+3-j) % 4)
                for ch in range(2):
                    if j == 0: k.e(f"v_mul_f32 v{u+ch}, v{kr+ch}, v{WP+ch}")
                    else: k.e(f"v_fmac_f32 v{u+ch}, v{kr+ch}, v{WP+2*j+ch}")
                    yield
            yield from self.seq(f"v_lshlrev_b32 v{a}, 16, v{P+12+r9}", f"v_and_b32 v{t}, s{sMASK}, v{P+12+r9}",
                                f"v_mul_f32 v{u}, v{u}, v{a}", f"v_mul_f32 v{u+1}, v{u+1}, v{t}")
            if r < 0:
                k.e(f"v_cvt_pk_bf16_f32 v{XS_}, v{u}, v{u+1}"); yield
            elif r & 1:
                q = (7 - r) // 2
                for ch in range(2):
                    k.e(f"v_cvt_pk_bf16_f32 v{O+4*ch+q}, v{U+2+ch}, v{U+ch}"); yield
        aw, bw, ar, bg, tr = range(self.PAD, self.PAD+5)
        k.lds(f"ds_write_b128 v{aw}, {q4(O)}", 'pw'); yield
        k.lds(f"ds_write_b128 v{aw}, {q4(O+4)} offset:128", 'pw'); yield
        k.lds(f"ds_write_b32 v{bw}, v{XS_}", 'pw')
        self.events.add('prep_written'); print('prep written', self.now)
        yield ('e', bar_evt)
        G2 = KW
        k.lds(f"ds_read_b128 {q4(O)}, v{ar}", 'prd'); yield
        k.lds(f"ds_read_b128 {q4(O+4)}, v{ar} offset:128", 'prd'); yield
        k.lds(f"ds_read_b32 v{G2+2}, v{tr}", 'prd')
        yield ('dt', 150)
        k.wait(lg='prd')
        self.events.add('prep_read')
        yield from self.seq(f"v_mov_b32 v{G2}, v{O+3}", f"v_mov_b32 v{G2+1}, v{O+7}", f"v_mov_b32 v{G2+3}, s{sTAG}",
                            f"v_mov_b32 v{O+3}, s{sTAG}", f"v_mov_b32 v{O+7}, s{sTAG}")
        yield ('t', self.ut_time)
        for j, r in enumerate((O, O+4, G2)):
            k.vmem(f"buffer_store_dwordx4 {q4(r)}, v{bg}, {WS}, s{sA0} offen offset:{128*j} sc1", 'ut')
        k.e("s_nop 0")
        self.events.add('prep_done'); print("prep done at", self.now)

    def g1_addr_dma(self):
        k = self.k; a, b, c = T[0], T[1], T[2]
        k.e(f"s_lshl_b32 s{sT0}, s{sMT}, 17"); k.e(f"s_lshl_b32 s{sT1}, s{sWAVE}, 15"); k.e(f"s_add_u32 s{sT0}, s{sT0}, s{sT1}")
        k.e(f"v_lshrrev_b32 v{a}, 3, v{vL}"); k.e(f"v_lshlrev_b32 v{a}, 10, v{a}"); k.e(f"v_add_u32 v{a}, s{sT0}, v{a}")
        k.e(f"v_lshrrev_b32 v{b}, 4, v{vL}"); k.e(f"v_xor_b32 v{b}, v{b}, v{vL}"); k.e(f"v_and_b32 v{b}, 7, v{b}")
        k.e(f"v_xor_b32 v{c}, 4, v{b}")
        for i in range(4):
            k.e(f"v_lshl_add_u32 v{XD+i}, v{c if i & 1 else b}, 4, v{a}")
            if i: k.e(f"v_add_u32 v{XD+i}, {i*7168}, v{XD+i}")
        k.e(f"s_and_b32 s{sT0}, s{sWAVE}, 1"); k.e(f"s_mul_i32 s{sT0}, s{sT0}, {32*3584}")
        k.e(f"s_lshl_b32 s{sT1}, s{sNT}, 8"); k.e(f"s_add_u32 s{sT0}, s{sT0}, s{sT1}")
        k.e(f"s_lshr_b32 s{sT2}, s{sWAVE}, 1"); k.e(f"s_lshl_b32 s{sT2}, s{sT2}, 2")
        k.e(f"v_lshrrev_b32 v{a}, 4, v{vL}")
        k.e(f"v_or_b32 v{b}, s{sT2}, v{a}")
        k.e(f"v_lshlrev_b32 v{b}, 1, v{b}"); k.e(f"v_xor_b32 v{b}, v{b}, v{vL}"); k.e(f"v_and_b32 v{b}, 15, v{b}")
        k.e(f"v_mul_u32_u24 v{a}, 3584, v{a}"); k.e(f"v_add_u32 v{a}, s{sT0}, v{a}")
        k.e(f"v_lshl_add_u32 v{WDv}, v{b}, 4, v{a}")
        for i in range(1, 4): k.e(f"v_add_u32 v{WDv+i}, {i*(4*3584-1024)}, v{WDv}")
    def g1_addr_rd(self):
        k = self.k; a, b, c, d = T[0], T[1], T[2], T[3]
        k.e(f"v_and_b32 v{a}, 31, v{vL}"); k.e(f"v_lshrrev_b32 v{b}, 1, v{a}"); k.e(f"v_and_b32 v{b}, 7, v{b}")
        k.e(f"v_lshrrev_b32 v{c}, 5, v{vL}"); k.e(f"v_xor_b32 v{b}, v{b}, v{c}"); k.e(f"v_lshlrev_b32 v{a}, 7, v{a}")
        for j in range(4):
            k.e(f"v_xor_b32 v{c}, {2*j}, v{b}")
            k.e(f"v_lshl_add_u32 v{XR+j}, v{c}, 4, v{a}")
            k.e(f"v_add_u32 v{XR2+j}, {XS[2]}, v{XR+j}")
        k.e(f"v_bfe_u32 v{a}, v{vL}, 4, 1"); k.e(f"v_bfe_u32 v{b}, v{vL}, 2, 2")
        k.e(f"v_lshl_add_u32 v{c}, v{a}, 2, v{b}")
        k.e(f"s_lshl_b32 s{sT0}, s{sWAVE}, 1")
        k.e(f"v_xor_b32 v{c}, s{sT0}, v{c}")
        k.e(f"v_lshlrev_b32 v{a}, 14, v{a}"); k.e(f"v_lshl_add_u32 v{a}, v{b}, 8, v{a}")
        k.e(f"v_lshrrev_b32 v{d}, 5, v{vL}"); k.e(f"v_lshl_add_u32 v{a}, v{d}, 11, v{a}")
        k.e(f"v_and_b32 v{d}, 3, v{vL}"); k.e(f"v_lshl_add_u32 v{a}, v{d}, 3, v{a}")
        k.e(f"v_add_u32 v{a}, {WSL[0]}, v{a}")
        k.e(f"v_lshl_add_u32 v{WR}, v{c}, 5, v{a}")
        k.e(f"v_xor_b32 v{c}, 1, v{c}")
        k.e(f"v_lshl_add_u32 v{WR+1}, v{c}, 5, v{a}")
        for e in range(2): k.e(f"v_add_u32 v{WR2+e}, {WSL[2]-WSL[0]}, v{WR+e}")
    def rot_setup(self):
        k = self.k; m = self.P.get('rot', 1)
        if m == 0:
            k.e(f"s_mov_b32 s{sOKH}, 0"); k.e(f"s_mov_b32 s{sXT}, s{sDT}"); return
        k.e(f"s_and_b32 s{sT0}, s{sIDX}, 3")
        if m == 3: k.e(f"s_lshl_b32 s{sT0}, s{sT0}, 1")
        k.e(f"s_add_u32 s{sOKH}, s{sT0}, s{sDT}")
        if m in (1, 2): k.e(f"s_lshl_b32 s{sOKH}, s{sOKH}, 2")
        if m == 4: k.e(f"s_lshl_b32 s{sOKH}, s{sOKH}, 1")
        if m == 2:
            k.e(f"s_lshr_b32 s{sT0}, s{sXCD}, 1"); k.e(f"s_add_u32 s{sOKH}, s{sOKH}, s{sT0}")
        k.e(f"s_sub_u32 s{sXT}, s{sDT}, s{sOKH}"); k.e(f"s_and_b32 s{sXT}, s{sXT}, 7")
    def g1_dma(self, t, pace=0):
        k = self.k; sl = t % 3
        k.e(f"s_add_u32 s{sXO}, s{sOKH}, {t}"); k.e(f"s_and_b32 s{sXO}, s{sXO}, 7"); k.e(f"s_mul_i32 s{sWO}, s{sXO}, {64*3584}")
        k.e(f"s_lshl_b32 s{sXO}, s{sXO}, 7")
        if pace: yield
        for i in range(8):
            ch = self.setm0(sW8K, WSL[sl] + (i//4)*4096)
            if i == 4: k.e(f"s_add_u32 s{sWO}, s{sWO}, {16*3584}")
            elif ch: k.e("s_nop 0")
            k.vmem(f"buffer_load_dwordx4 v{WDv+(i%4)}, {W}, s{sWO} offen offset:{1024*(i%4)} lds", ('g1', t))
            yield ('dt', pace)
        for i in range(4):
            ch = self.setm0(sW4K, XS[sl])
            if ch: k.e("s_nop 0")
            k.vmem(f"buffer_load_dwordx4 v{XD+i}, {X}, s{sXO} offen offset:{1024*i} lds", ('g1', t))
            yield ('dt', pace)
        self.events.add(('dma', t))
    def g1_reads(self, step):
        k = self.k; t, j = step // 4, step % 4; sl = t % 3
        def wr(e, tt):
            reg = (WR2 if sl == 2 else WR) + e
            off = (WSL[1]-WSL[0] if sl == 1 else 0) + (16*j + 4*tt)*256
            d = WFR + 8*(step & 1) + 4*e + 2*tt
            return lambda: k.lds(f"ds_read_b64_tr_b16 {pr(d)}, v{reg} offset:{off}", ('w', step, e))
        def xr(b):
            reg = (XR2 if sl == 2 else XR) + j
            off = (XS[1] if sl == 1 else 0) + 4096*b
            d = XFR + 16*(step & 1) + 4*b
            return lambda: k.lds(f"ds_read_b128 a[{d}:{d+3}], v{reg} offset:{off}", ('x', step, b))
        return [wr(0, 0), wr(0, 1), xr(0), xr(1), xr(2), xr(3), wr(1, 0), wr(1, 1)]
    def g1_loop(self):
        k = self.k
        self.stamp('g1')
        k.wait(vm=('g1', 0)); k.e("s_barrier")
        self.stamp('g1')
        for f in self.g1_reads(0): f()
        for step in range(32):
            t, j = step // 4, step % 4
            if j == 3 and t < 7:
                assert ('dma', t+1) in self.events
                k.wait(vm=('g1', t+1), lg='all'); k.e("s_barrier")
                self.events.add(('bar', t)); self.stamp('g1')
                if 'prep_written' in self.events: self.events.add('bar_after_pw')
                if 'prep_read' in self.events: self.events.add('bar_after_prd')
                if t + 3 < 8: self.add('g1dma', self.after(('dma', t+2), self.g1_dma(t+3, 60)), 0)
            if j == 3 and t == 7:
                k.wait(lg='all'); k.e("s_barrier"); self.events.add(('bar', 7))
                if 'prep_read' in self.events: self.events.add('bar_after_prd')
            rd = self.g1_reads(step+1) if step < 31 else []
            for i in range(8):
                e, b = i // 4, i % 4
                if j == 0 and i == 5: self.x_capture(t)
                k.wait(lg=[('w', step, e), ('x', step, b)])
                acc = ACC + 16*i
                cin = "0" if step == 0 else f"v[{acc}:{acc+15}]"
                wf = WFR + 8*(step & 1) + 4*e; xf = XFR + 16*(step & 1) + 4*b
                k.e(f"v_mfma_f32_32x32x16_bf16 v[{acc}:{acc+15}], {q4(wf)}, a[{xf}:{xf+3}], {cin}")
                nrd = 2 if j == 2 else 1; used = 0
                for _ in range(nrd):
                    if rd: rd.pop(0)(); used += 1
                self.fill(self.P['cap'] + 1 - used, 33)
    def xcap_addr(self, e, a, b):
        e(f"s_and_b32 s{sT0}, s{sXCD}, 1"); e(f"s_lshl_b32 s{sT0}, s{sT0}, 13"); e(f"s_lshr_b32 s{sT1}, s{sWAVE}, 1"); e(f"s_lshl_b32 s{sT1}, s{sT1}, 12")
        e(f"s_add_u32 s{sT0}, s{sT0}, s{sT1}"); e(f"s_and_b32 s{sT1}, s{sWAVE}, 1"); e(f"s_lshl_b32 s{sT1}, s{sT1}, 2")
        e(f"v_bfe_u32 v{a}, v{vL}, 1, 3"); e(f"v_xor_b32 v{a}, s{sT1}, v{a}"); e(f"v_lshlrev_b32 v{a}, 4, v{a}")
        e(f"v_and_b32 v{b}, 31, v{vL}"); e(f"v_lshl_add_u32 v{a}, v{b}, 7, v{a}")
        e(f"v_lshrrev_b32 v{b}, 5, v{vL}"); e(f"v_lshl_add_u32 v{a}, v{b}, 3, v{a}"); e(f"v_add_u32 v{a}, s{sT0}, v{a}")
    def x_capture(self, t):
        def body(e, lab):
            a, b = vMEAN, vRSTD
            if t >= 6: a, b = vP, T[3]
            self.xcap_addr(e, a, b)
            e(f"v_add_u32 v{a}, {XS[t % 3]}, v{a}")
            for j in range(4):
                if j: e(f"v_xor_b32 v{b}, {16*j}, v{a}")
                e(f"ds_read_b64 a[{XK+2*j}:{XK+2*j+1}], v{b if j else a}")
        self.k.e(f"s_cmp_eq_u32 s{sXT}, {t}")
        self.ool("xcap", "s_cbranch_scc1", body)
    CA, CB = FREE, FREE + 8
    SL = FREE + 24
    def corr_proc(self):
        CA, CB = self.CA, self.CB; out = [f"v_mov_b32 v{vMEAN}, v{self.SL}", f"v_mov_b32 v{vRSTD}, v{self.SL+2}"]
        for e in range(2):
            r = CA + 4*e
            out += [f"v_and_b32 v{r+2}, s{sMASK}, v{r}", f"v_sub_f32 v{r}, v{r}, v{r+2}", f"v_and_b32 v{r+3}, s{sMASK}, v{r}",
                    f"v_sub_f32 v{r}, v{r}, v{r+3}", f"v_lshrrev_b32 v{r+1}, 16, v{r}", f"v_lshrrev_b32 v{r+2}, 16, v{r+2}",
                    f"v_or_b32 v{r}, v{r+2}, v{r+3}", f"v_mov_b32 v{r+2}, 0", f"v_mov_b32 v{r+3}, 0"]
        for bl in range(4):
            r = CB + 4*bl
            out += [f"v_mul_f32 v{r}, -0.5, v{r}", f"v_lshrrev_b32 v{r+1}, 16, v{r}", f"v_and_or_b32 v{r}, v{r}, s{sMASK}, v{r+1}",
                    f"v_mov_b32 v{r+2}, 0", f"v_mov_b32 v{r+3}, 0"]
        return out
    def corr_task(self):
        k = self.k; CA, CB = self.CA, self.CB
        a, b = T[7], T[8]
        assert ('dma', 7) in self.events and ('bar', 5) in self.events and 'prep_written' in self.events
        k.e(f"s_lshl_b32 s{sA2}, s{sNT}, 11"); k.e(f"s_lshl_b32 s{sA3}, s{sWAVE}, 9"); yield
        k.e(f"s_add_u32 s{sA2}, s{sA2}, s{sA3}"); k.e(f"s_add_u32 s{sA2}, s{sA2}, {WF_OFF}"); yield
        k.e(f"s_lshl_b32 s{sA3}, s{sMT}, 11"); k.e(f"s_add_u32 s{sA3}, s{sA3}, {ST_OFF}"); yield
        lds = [f"buffer_load_dwordx2 {pr(CA+4*e)}, v{a}, {WS}, s{sA2} offen offset:{256*e} sc1" for e in range(2)]
        lds += [f"buffer_load_dwordx2 {pr(CB+4*bl)}, v{b}, {WS}, s{sA3} offen offset:{512*bl} sc1" for bl in range(4)]
        k.e(f"s_and_b32 s{sOKC}, s{sXCD}, 1"); k.e(f"s_lshl_b32 s{sOKC}, s{sOKC}, 10"); yield
        k.e(f"s_lshr_b32 s{sXO}, s{sWAVE}, 1"); k.e(f"s_lshl_b32 s{sXO}, s{sXO}, 9"); yield
        k.e(f"s_add_u32 s{sXO}, s{sXO}, s{sOKC}"); k.e(f"s_add_u32 s{sXO}, s{sXO}, s{sA3}"); yield
        lds.append(f"buffer_load_dwordx4 {q4(self.SL)}, v{b}, {WS}, s{sXO} offen sc1")
        self.corr_lds = lds; self.corr_chk = [CA+1, CA+5] + [CB+4*bl+1 for bl in range(4)] + [self.SL+1, self.SL+3]
        for l in lds:
            k.vmem(l, 'corr'); yield
        self.events.add('corr_issued')
        yield ('dt', self.P['corr_lat'])
        k.wait(vm='corr')
        self.record_ok(self.corr_chk, sOKC); yield
        yield from self.seq(*self.corr_proc())
    def g1_epilogue(self):
        k = self.k; CA, CB = self.CA, self.CB
        self.stamp('g1')
        self.drain('corr')
        def body(e, lab):
            self.spin(e, lab, "corr", self.corr_lds, self.corr_chk)
            for s in self.corr_proc(): e(s)
        self.redo("corr", sOKC, body)
        k.e(f"s_mul_i32 s{sA2}, s{sMT}, {4*112}"); k.e(f"s_lshl_b32 s{sA3}, s{sNT}, 3")
        for i in range(8):
            e, bl = i // 4, i % 4; acc = ACC + 16*i
            k.e(f"v_mfma_f32_32x32x16_bf16 v[{acc}:{acc+15}], {q4(CA+4*e)}, {q4(CB+4*bl)}, v[{acc}:{acc+15}]")
            self.fill(self.P['cap'] + 1, 33)
        k.e(f"s_add_u32 s{sA2}, s{sA2}, s{sA3}"); k.e(f"s_lshl_b32 s{sA3}, s{sWAVE}, 1")
        k.e(f"s_add_u32 s{sA2}, s{sA2}, s{sA3}"); k.e(f"s_lshl_b32 s{sA2}, s{sA2}, 10")
        k.e(f"s_add_u32 s{sA2}, s{sA2}, {H_OFF}")
        self.stamp('g1')
        for i in range(8):
            e, bl = i // 4, i % 4; acc = ACC + 16*i
            for r in range(8): k.e(f"v_max_f32 v{acc+r}, 0, v{acc+r}")
            for r in range(0, 8, 2): k.e(f"v_pk_mul_f32 {pr(acc+r)}, {pr(acc+r)}, {pr(acc+8+r)}")
            for r in range(4): k.e(f"v_cvt_pk_bf16_f32 v{acc+8+r}, v{acc+2*r}, v{acc+2*r+1}")
            k.e(f"s_add_u32 s{sA3}, s{sA2}, {bl*112*1024}")
            k.vmem(f"buffer_store_dwordx4 {q4(acc+8)}, v{vL16}, {WS}, s{sA3} offen offset:{1024*e} sc1", 'h')
            self.now += 80
    def hflag_task(self):
        k = self.k
        k.e(f"s_lshl_b32 s{sA2}, s{sMT}, 13"); k.e(f"s_and_b32 s{sA3}, s{sXCD}, 1"); yield
        k.e(f"s_lshl_b32 s{sA3}, s{sA3}, 12"); k.e(f"s_add_u32 s{sA2}, s{sA2}, s{sA3}"); yield
        k.e(f"s_lshl_b32 s{sA3}, s{sDT}, 9"); k.e(f"s_add_u32 s{sA2}, s{sA2}, s{sA3}"); yield
        k.e(f"s_lshl_b32 s{sA3}, s{sWAVE}, 7"); k.e(f"s_add_u32 s{sA2}, s{sA2}, s{sA3}"); yield
        k.e(f"s_add_u32 s{sA2}, s{sA2}, {HF}")
        yield ('t', self.h_time + self.P['h_drain'])
        k.wait(vm='h'); self.flag(sA2)

    def rne(self, r):
        k = self.k
        k.e(f"v_cvt_pk_bf16_f32 v{r}, v{r}, v{r}"); k.e(f"v_and_b32 v{r}, s{sMASK}, v{r}")
    XL, WL = 64, 128
    def aux_addr(self):
        k = self.k; a, b, c = T[7], T[8], T[9]
        k.e(f"s_sub_u32 s{sA4}, s{sIDX}, 28")
        k.e(f"s_lshl_b32 s{sT0}, s{sXCD}, 8"); k.e(f"s_lshl_b32 s{sT1}, s{sA4}, 6"); k.e(f"s_add_u32 s{sT0}, s{sT0}, s{sT1}")
        k.e(f"s_lshl_b32 s{sT1}, s{sWAVE}, 4"); k.e(f"s_add_u32 s{sA5}, s{sT0}, s{sT1}")
        k.e(f"s_lshl_b32 s{sT2}, s{sA5}, 10")
        k.e(f"v_lshrrev_b32 v{a}, 4, v{vL}"); k.e(f"v_lshlrev_b32 v{a}, 12, v{a}")
        k.e(f"v_and_b32 v{b}, 15, v{vL}"); k.e(f"v_lshl_add_u32 v{a}, v{b}, 4, v{a}"); k.e(f"v_add_u32 v{a}, s{sT2}, v{a}")
        k.e(f"s_lshr_b32 s{sT0}, s{sXCD}, 1"); k.e(f"s_lshl_b32 s{sT0}, s{sT0}, 2"); k.e(f"s_add_u32 s{sT0}, s{sT0}, s{sA4}")
        k.e(f"s_min_u32 s{sT0}, s{sT0}, 13")
        k.e(f"s_and_b32 s{sT1}, s{sXCD}, 1"); k.e(f"s_mul_i32 s{sT1}, s{sT1}, 14"); k.e(f"s_add_u32 s{sA6}, s{sT0}, s{sT1}")
        k.e(f"s_and_b32 s{sT0}, s{sWAVE}, 1"); k.e(f"s_mul_i32 s{sT0}, s{sT0}, {8*3584}")
        k.e(f"s_lshl_b32 s{sT1}, s{sA6}, 7"); k.e(f"s_add_u32 s{sT0}, s{sT0}, s{sT1}")
        k.e(f"v_lshrrev_b32 v{b}, 3, v{vL}"); k.e(f"v_mul_u32_u24 v{b}, 3584, v{b}")
        k.e(f"v_and_b32 v{c}, 7, v{vL}"); k.e(f"v_lshl_add_u32 v{b}, v{c}, 4, v{b}"); k.e(f"v_add_u32 v{b}, s{sT0}, v{b}")
    def aux_loads(self, pace=0):
        k = self.k; a, b = T[7], T[8]; XL, WL = self.XL, self.WL
        st0 = 2
        self.aorder = []
        for q in range(4):
            i = (st0 // 2 + q) % 4
            for z in range(8*i, 8*i+8):
                k.e(f"s_mov_b32 s{sWO}, {z*16*3584}")
                k.vmem(f"buffer_load_dwordx4 {q4(WL+4*z)}, v{b}, {W}, s{sWO} offen", ('sw', z)); self.aorder.append(('sw', z))
                yield ('dt', pace)
                if z % 2 == 1:
                    p = (z % 8) // 2
                    k.vmem(f"buffer_load_dwordx4 {q4(XL+16*p+4*i)}, v{a}, {X}, 0 offen offset:{1024*p + 256*i}", ('sx', p, i))
                    self.aorder.append(('sx', p, i))
                    yield ('dt', pace)
    def aux_compute(self, al):
        k = self.k; a, b, c = T[0], T[1], T[2]; XL, WL = self.XL, self.WL
        SEL, WA, SA = 16, 20, 24
        k.e(f"v_and_b32 v{a}, 15, v{vL}"); k.e(f"v_lshrrev_b32 v{b}, 1, v{a}"); k.e(f"v_and_b32 v{a}, 1, v{a}")
        k.e(f"v_lshlrev_b32 v{a}, 4, v{a}"); k.e(f"v_mov_b32 v{c}, 0x3f80"); k.e(f"v_lshlrev_b32 v{c}, v{a}, v{c}")
        for i in range(4):
            k.e(f"v_cmp_eq_u32 vcc, {i}, v{b}"); k.e("s_nop 1"); k.e(f"v_cndmask_b32 v{SEL+i}, 0, v{c}, vcc")
        for i in range(8): k.e(f"v_mov_b32 v{SA+i}, 0")
        k.e(f"s_mov_b32 s{sA7}, 0x3f803f80")
        n = 0; first = True
        while n < 48:
            if not al['done'] and len(self.aorder) < 48: self._step(al)
            it = self.aorder[n]; n += 1
            k.wait(vm=it)
            if it[0] == 'sw':
                k.e(f"v_mfma_f32_16x16x32_bf16 {q4(WA)}, {q4(WL+4*it[1])}, {q4(SEL)}, {'0' if first else q4(WA)}"); first = False
            else:
                p, i = it[1], it[2]
                for j in range(4):
                    r = XL + 16*p + 4*i + j
                    k.e(f"v_dot2_f32_bf16 v{SA+2*p}, v{r}, s{sA7}, v{SA+2*p}")
                    k.e(f"v_dot2_f32_bf16 v{SA+2*p+1}, v{r}, v{r}, v{SA+2*p+1}")
        self.drain('al')
        k.e(f"v_lshrrev_b32 v{a}, 5, v{vL}"); k.e(f"v_lshlrev_b32 v{a}, 8, v{a}")
        k.e(f"v_bfe_u32 v{b}, v{vL}, 4, 1"); k.e(f"v_lshl_add_u32 v{a}, v{b}, 7, v{a}")
        k.e(f"v_and_b32 v{b}, 7, v{vL}"); k.e(f"v_lshl_add_u32 v{a}, v{b}, 2, v{a}")
        k.e(f"v_bfe_u32 v{b}, v{vL}, 3, 1"); k.e(f"v_lshl_add_u32 v{a}, v{b}, 12, v{a}")
        k.e(f"s_lshl_b32 s{sT0}, s{sWAVE}, 9"); k.e(f"v_add_u32 v{a}, s{sT0}, v{a}")
        for r in range(4): k.lds(f"ds_write_b32 v{a}, v{WA+r} offset:{32*r}")
        for sh in (8, 4, 2, 1):
            for i in range(8): k.e(f"v_add_f32_dpp v{SA+i}, v{SA+i}, v{SA+i} row_ror:{sh} row_mask:0xf bank_mask:0xf")
        k.wait(lg='all'); k.e("s_barrier")
        k.e(f"v_bfe_u32 v{b}, v0, 6, 1"); k.e(f"v_lshlrev_b32 v{a}, 10, v{b}"); k.e(f"v_lshl_add_u32 v{a}, v{vL}, 2, v{a}")
        for i in range(4): k.lds(f"ds_read_b32 v{32+i}, v{a} offset:{256*i}")
        k.e(f"v_lshrrev_b32 v{a}, 4, v{vL}"); k.e(f"v_lshlrev_b32 v{a}, 8, v{a}"); k.e(f"v_lshl_add_u32 v{a}, v{b}, 7, v{a}")
        k.e(f"v_and_b32 v{c}, 15, v{vL}"); k.e(f"v_lshl_add_u32 v{a}, v{c}, 3, v{a}")
        k.e(f"v_lshrrev_b32 v{c}, 7, v0"); k.e(f"v_lshl_add_u32 v{a}, v{c}, 30, v{a}")
        k.e(f"s_lshl_b32 s{sT0}, s{sA6}, 10"); k.e(f"s_add_u32 s{sT0}, s{sT0}, {WF_OFF}")
        k.wait(lg='all')
        k.e("v_add_f32 v32, v32, v33"); k.e("v_add_f32 v34, v34, v35"); k.e(f"v_mov_b32 v33, s{sTAG}"); k.e("v_add_f32 v32, v32, v34")
        k.vmem(f"buffer_store_dwordx2 v[32:33], v{a}, {WS}, s{sT0} offen sc1", 'wf')
        self.stamp('g1')
        k.e(f"v_and_b32 v{a}, 3, v{vL}")
        for p in range(1, 4):
            k.e(f"v_cmp_eq_u32 vcc, {p}, v{a}"); k.e("s_nop 1")
            k.e(f"v_cndmask_b32 v{SA}, v{SA}, v{SA+2*p}, vcc"); k.e(f"v_cndmask_b32 v{SA+1}, v{SA+1}, v{SA+2*p+1}, vcc")
        k.e(f"v_mul_f32 v36, 0x3b000000, v{SA}"); k.e(f"v_mul_f32 v40, 0x3b000000, v{SA+1}")
        k.e("v_fma_f32 v40, -v36, v36, v40"); k.e("v_max_f32 v40, 0, v40")
        self.rne(36); self.rne(40)
        k.e("v_add_f32 v40, 0x3727c5ac, v40"); self.rne(40)
        k.e("v_sqrt_f32 v40, v40"); k.e("s_nop 0"); self.rne(40)
        k.e("v_rcp_f32 v38, v40")
        k.e(f"v_mov_b32 v37, s{sTAG}"); k.e(f"v_mov_b32 v39, s{sTAG}")
        k.e(f"v_lshrrev_b32 v{b}, 4, v{vL}"); k.e(f"v_lshl_add_u32 v{a}, v{b}, 2, v{a}"); k.e(f"v_lshlrev_b32 v{a}, 4, v{a}")
        k.e(f"s_lshl_b32 s{sT0}, s{sA5}, 4"); k.e(f"s_add_u32 s{sT0}, s{sT0}, {ST_OFF}")
        k.e(f"v_and_b32 v{b}, 12, v{vL}"); k.e(f"v_lshl_add_u32 v{a}, v{b}, 27, v{a}")
        k.vmem(f"buffer_store_dwordx4 v[36:39], v{a}, {WS}, s{sT0} offen sc1", 'st')
        k.e("s_nop 1")
        self.stamp('g1')
    def aux_final_inputs(self):
        k = self.k; a, b = T[0], T[1]
        k.e(f"s_and_b32 s{sT0}, s{sXCD}, 1"); k.e(f"s_lshl_b32 s{sT0}, s{sT0}, 1"); k.e(f"s_lshr_b32 s{sT1}, s{sWAVE}, 1"); k.e(f"s_add_u32 s{sT0}, s{sT0}, s{sT1}")
        k.e(f"s_lshl_b32 s{sT1}, s{sMT}, 2"); k.e(f"s_add_u32 s{sT0}, s{sT0}, s{sT1}")
        k.e(f"s_lshl_b32 s{sA2}, s{sT0}, 9"); k.e(f"s_add_u32 s{sA2}, s{sA2}, {ST_OFF}")
        k.e(f"s_lshl_b32 s{sT0}, s{sT0}, 15"); k.e(f"s_lshl_b32 s{sT1}, s{sDT}, 7"); k.e(f"s_add_u32 s{sT0}, s{sT0}, s{sT1}")
        k.e(f"s_and_b32 s{sT1}, s{sWAVE}, 1"); k.e(f"s_lshl_b32 s{sT1}, s{sT1}, 6"); k.e(f"s_add_u32 s{sT0}, s{sT0}, s{sT1}")
        k.e(f"v_and_b32 v{b}, 31, v{vL}"); k.e(f"v_lshlrev_b32 v{a}, 10, v{b}"); k.e(f"v_lshlrev_b32 v{T[3]}, 4, v{b}")
        k.e(f"v_lshrrev_b32 v{b}, 5, v{vL}"); k.e(f"v_lshl_add_u32 v{a}, v{b}, 3, v{a}")
        for j in range(4): k.vmem(f"buffer_load_dwordx2 a[{XK+2*j}:{XK+2*j+1}], v{a}, {X}, s{sT0} offen offset:{16*j}", 'xk')
        self.aux_stl = f"buffer_load_dwordx4 {q4(self.SL)}, v{T[3]}, {WS}, s{sA2} offen sc1"
    def aux_stats(self):
        k = self.k
        k.vmem(self.aux_stl, 'stl'); k.wait(vm='all')
        self.retry("st", [self.aux_stl], [self.SL+1, self.SL+3])
        k.e(f"v_mov_b32 v{vMEAN}, v{self.SL}"); k.e(f"v_mov_b32 v{vRSTD}, v{self.SL+2}")
    def gen_update(self):
        k = self.k
        skip = k.newlabel("gskip"); lp = k.newlabel("glp"); ok = k.newlabel("gok")
        k.e("s_cmp_lg_u32 s2, 255"); k.e(f"s_cbranch_scc1 {skip}")
        k.e(f"s_cmp_lg_u32 s{sWAVE}, 0"); k.e(f"s_cbranch_scc1 {skip}")
        R = FREE
        k.e(f"s_mov_b32 s{sCNT}, 0"); k.e(f"s_mov_b32 s{sT0}, {UT_OFF + 12}")
        k.e(f"v_lshrrev_b32 v{R+4}, 3, v{vL}"); k.e(f"v_mul_u32_u24 v{R+4}, {32*12288}, v{R+4}")
        k.e(f"v_and_b32 v{R+5}, 7, v{vL}"); k.e(f"v_mul_u32_u24 v{R+5}, {4*384}, v{R+5}"); k.e(f"v_add_u32 v{R+4}, v{R+4}, v{R+5}")
        k.label(lp)
        for i in range(4): k.e(f"buffer_load_dword v{R+i}, v{R+4}, {WS}, s{sT0} offen offset:{384*i} sc1")
        k.e("s_waitcnt vmcnt(0)")
        self.cmpall(k.e, [R, R+1, R+2, R+3]); k.e(f"s_cbranch_vccz {ok}")
        k.e("s_sleep 1"); k.e(f"s_add_u32 s{sCNT}, s{sCNT}, 1"); k.e(f"s_cmp_lt_u32 s{sCNT}, 0x10000"); k.e(f"s_cbranch_scc1 {lp}")
        k.label(ok)
        k.e(f"s_movk_i32 s{sT0}, {GW}")
        k.e(f"buffer_store_dword v{vTAG}, v{vFLAG}, {WS}, s{sT0} offen sc1")
        k.e("s_waitcnt vmcnt(0)")
        k.label(skip)

    def conv_addr(self):
        k = self.k; e = k.e; a, b, c, d = T[4], T[5], T[6], T[9]
        e(f"s_lshr_b32 s{sT0}, s{sWAVE}, 1"); e(f"s_mul_i32 s{sA4}, s{sT0}, {HC_CH}"); e(f"s_add_u32 s{sA4}, s{sA4}, {HC}")
        e(f"s_and_b32 s{sA5}, s{sWAVE}, 1")
        e(f"s_mul_i32 s{sT0}, s{sT0}, {UC_CH}"); e(f"s_lshl_b32 s{sT1}, s{sA5}, 8"); e(f"s_add_u32 s{sT0}, s{sT0}, s{sT1}")
        e(f"s_add_u32 s{sT0}, s{sT0}, {UC + 4032 - 3584}"); e(f"s_add_u32 s{sT1}, s{sT1}, s{sA4}")
        for x in (f"v_and_b32 v{a}, 1, v{vL}", f"v_mul_u32_u24 v{a}, {UC_CP}, v{a}", f"v_bfe_u32 v{b}, v{vL}, 1, 3", f"v_lshlrev_b32 v{b}, 6, v{b}",
                  f"v_sub_u32 v{a}, v{a}, v{b}", f"v_lshrrev_b32 v{c}, 4, v{vL}", f"v_lshl_add_u32 v{a}, v{c}, 4, v{a}", f"v_add_u32 v{AU}, s{sT0}, v{a}",
                  f"v_and_b32 v{a}, 15, v{vL}", f"v_add_u32 v{a}, 1, v{a}", f"v_lshrrev_b32 v{b}, 2, v{a}", f"v_add_u32 v{b}, v{b}, v{c}",
                  f"v_and_b32 v{a}, 3, v{a}", f"v_min_u32 v{d}, 1, v{a}", f"v_add_u32 v{b}, v{b}, v{d}", f"v_mul_u32_u24 v{a}, {260*16}, v{a}",
                  f"v_lshl_add_u32 v{a}, v{b}, 4, v{a}", f"v_add_u32 v{AH}, s{sT1}, v{a}",
                  f"v_bfe_u32 v{a}, v{vL}, 4, 1", f"v_lshl_add_u32 v{a}, s{sA5}, 1, v{a}", f"v_and_b32 v{b}, 15, v{vL}",
                  f"v_add_u32 v{c}, v{a}, v{b}", f"v_mul_u32_u24 v{d}, {260*16}, v{a}", f"v_min_u32 v{a}, 1, v{a}",
                  f"v_cmp_gt_u32 vcc, 16, v{c}", f"v_lshl_add_u32 v{d}, v{a}, 4, v{d}", f"v_mov_b32 v{c}, 0", f"v_cndmask_b32 v{b}, 0, v{b}, vcc",
                  f"v_lshl_add_u32 v{d}, v{b}, 2, v{d}", f"v_add_u32 v{d}, s{sA4}, v{d}"): e(x)
        e(f"v_and_b32 v{T[7]}, 31, v{vL}"); e(f"v_lshlrev_b32 v{T[8]}, 4, v{T[7]}"); e(f"v_lshlrev_b32 v{T[7]}, 3, v{T[7]}")
    def hc_task(self):
        k = self.k
        k.e(f"s_lshr_b32 s{sA6}, s{sWAVE}, 1"); k.e(f"s_lshl_b32 s{sA7}, s{sCP}, 1"); yield
        k.e(f"s_add_u32 s{sA7}, s{sA7}, s{sA6}"); k.e(f"s_lshl_b32 s{sA7}, s{sA7}, 12"); yield
        for cc in range(2):
            lo = HC_BASE[cc] + 64 - 4*cc; hi = HC_BASE[2+cc] + 64 - 4*(2+cc)
            k.e(f"s_mul_i32 s{sA6}, s{sA5}, {hi-lo}"); k.e(f"s_add_u32 s{sA6}, s{sA6}, s{sA4}"); self.m0 = None; yield
            for i in range(4):
                if self.setm0(sA6, lo): k.e("s_nop 0")
                k.vmem(f"buffer_load_dwordx4 v{vL16}, {HK}, s{sA7} offen offset:{1024*i} lds", 'hc')
                yield ('dt', 60)
            self.m0 = None
        k.lds(f"ds_write_b32 v{T[9]}, v{T[6]}", 'hz')
        self.events.add('hc_done')
    SH = FREE + 28
    def u_parts(self):
        a, g = T[10], T[2]; SH = self.SH
        loads = [f"buffer_load_dwordx4 {q4(UR+4*j)}, v{g}, {WS}, s{sA7} offen offset:{128*j} sc1" for j in range(3)]
        chk = [UR+3, UR+7, UR+11]
        wr = [f"v_mov_b32 v{UR+3}, v{UR+8}", f"v_mov_b32 v{UR+7}, v{UR+9}"]
        for ch in range(2):
            u = UR + 4*ch
            wr.append(f"ds_write_b128 v{a}, {q4(u)} offset:{UC + ch*UC_CH + UC_CP}")
            wr += [f"v_alignbit_b32 v{SH+4*ch+i}, v{u+i+1}, v{u+i}, 16" for i in range(3)]
            wr.append(f"v_alignbit_b32 v{SH+3}, v{UR+10}, v{u+3}, 16" if ch == 0 else f"v_perm_b32 v{SH+7}, v{UR+10}, v{u+3}, s{sA6}")
            wr.append(f"ds_write_b128 v{a}, {q4(SH+4*ch)} offset:{UC + ch*UC_CH}")
        return loads, chk, wr
    def u_task(self, lds_evt):
        k = self.k; a, g, z = T[10], T[2], T[1]; SH = self.SH
        assert 'prep_done' in self.events and 'hc_done' in self.events
        loads, chk, wr = self.u_parts()
        k.e(f"s_mul_i32 s{sA7}, s{sCP}, 12288"); k.e(f"s_add_u32 s{sA7}, s{sA7}, {UT_OFF}"); yield
        k.e(f"s_mov_b32 s{sA6}, 0x07060302"); yield
        yield from self.seq(f"v_lshrrev_b32 v{g}, 3, v0", f"v_mul_u32_u24 v{g}, 384, v{g}", f"v_and_b32 v{a}, 7, v0", f"v_lshl_add_u32 v{g}, v{a}, 4, v{g}")
        yield from self.seq(f"v_lshlrev_b32 v{a}, 4, v0", *[f"v_mov_b32 v{SH+8+i}, 0" for i in range(4)])
        yield from self.seq(f"v_and_b32 v{z}, 31, v{vL}", f"v_min_u32 v{z}, 27, v{z}", f"v_lshlrev_b32 v{z}, 4, v{z}")
        k.e(f"s_mul_i32 s{sT0}, s{sWAVE}, {UC_CP}"); k.e(f"v_add_u32 v{z}, s{sT0}, v{z}")
        yield ('e', lds_evt)
        k.lds(f"ds_write_b128 v{z}, {q4(SH+8)} offset:{UC + 4096}", 'uw')
        yield ('t', self.P['uld'])
        for l in loads: k.vmem(l, 'u')
        yield ('t', 1 << 30)
        k.wait(vm='u'); self.record_ok(chk, sOKU); yield
        for s in wr:
            if s.startswith("ds_"): k.lds(s, 'uw')
            else: k.e(s)
            yield
    def u_redo(self):
        loads, chk, wr = self.u_parts()
        def body(e, lab):
            e("s_waitcnt lgkmcnt(0)")
            self.spin(e, lab, "u", loads, chk)
            for s in wr: e(s)
        self.redo("u", sOKU, body)

    def wd_addr(self):
        k = self.k; a, b = T[0], T[1]
        k.e(f"s_and_b32 s{sT0}, s{sXCD}, 1"); k.e(f"s_lshl_b32 s{sT0}, s{sT0}, 2"); k.e(f"s_add_u32 s{sT0}, s{sT0}, s{sWAVE}")
        k.e(f"s_mul_i32 s{sT0}, s{sT0}, {224*1024}"); k.e(f"s_lshl_b32 s{sT1}, s{sDT}, 7"); k.e(f"s_add_u32 s{sT0}, s{sT0}, s{sT1}")
        k.e(f"v_lshrrev_b32 v{a}, 3, v{vL}"); k.e(f"v_lshlrev_b32 v{a}, 10, v{a}"); k.e(f"v_add_u32 v{a}, s{sT0}, v{a}")
        k.e(f"v_bfe_u32 v{b}, v{vL}, 4, 1"); k.e(f"v_lshlrev_b32 v{b}, 2, v{b}"); k.e(f"v_xor_b32 v{b}, v{b}, v{vL}"); k.e(f"v_and_b32 v{b}, 7, v{b}")
        k.e(f"v_lshl_add_u32 v{WV}, v{b}, 4, v{a}"); k.e(f"v_add_u32 v{WV+1}, 7168, v{WV}")
        k.e(f"v_lshrrev_b32 v{a}, 5, v{vL}"); k.e(f"v_lshlrev_b32 v{a}, 9, v{a}")
        k.e(f"v_bfe_u32 v{b}, v{vL}, 2, 2"); k.e(f"v_lshl_add_u32 v{a}, v{b}, 7, v{a}")
        k.e(f"v_bfe_u32 v{b}, v{vL}, 4, 1"); k.e(f"v_lshl_add_u32 v{a}, v{b}, 5, v{a}")
        k.e(f"v_and_b32 v{b}, 3, v{vL}"); k.e(f"v_lshl_add_u32 v{vYL}, v{b}, 3, v{a}")
        k.e(f"v_add_u32 v{a}, s{sW2K}, v{vYL}")
        k.e(f"s_and_b32 s{sT0}, s{sWAVE}, 1")
        k.e(f"v_bfe_u32 v{b}, v{vL}, 3, 1"); k.e(f"v_xor_b32 v{b}, s{sT0}, v{b}")
        k.e(f"v_lshl_add_u32 v{WT0}, v{b}, 6, v{a}"); k.e(f"v_xor_b32 v{WT0+1}, 64, v{WT0}")
        for r in range(2): k.e(f"v_add_u32 v{WT+r}, 0x20000, v{WT0+r}")
    def wd_slot_task(self, base):
        k = self.k
        reg, rel = (WT, base - 131072) if base >= 131072 else (WT0, base)
        assert 0 <= rel < 65536 - 2048
        while self.wd_next < 14:
            fb = self.wd_next; self.wd_next += 1
            k.wait(lg=('wdr', base))
            self.setm0(sW2K, base); k.e(f"s_mov_b32 s{sDO}, {fb*16384}")
            for z in range(2):
                k.vmem(f"buffer_load_dwordx4 v{WV+z}, {WD}, s{sDO} offen offset:{1024*z} lds", ('wd', fb))
            yield ('dt', self.P['wd_lat'])
            k.wait(vm=('wd', fb))
            for role in range(2):
                for t in range(2):
                    d = 8*fb + 4*role + 2*t
                    k.lds(f"ds_read_b64_tr_b16 a[{d}:{d+1}], v{reg + role} offset:{rel + 1024*t}", ('wdr', base))
                    yield
            if fb == 13: print("wd last read at", self.now)
            yield ('dt', 200)

    CF, CAC = 128, 96
    def conv(self):
        k = self.k; FB, AC = self.CF, self.CAC
        self.drain('hc', 'u')
        self.u_redo()
        k.wait(vm='hc', lg='all'); k.e("s_barrier")
        self.events.add('conv_start')
        self.stamp()
        def reads(r):
            base = FB + 64*(r & 1); out = []
            for i in range(8):
                out.append(lambda i=i: k.lds(f"ds_read_b128 {q4(base+8*i)}, v{AU} offset:{512*(7-i) + 64*r}", ('cu', r, i)))
                out.append(lambda i=i: k.lds(f"ds_read_b128 {q4(base+8*i+4)}, v{AH} offset:{512*i + 64*r}", ('ch', r, i)))
            return out
        for f in reads(0): f()
        order = sorted([(p, q) for p in range(8) for q in range(8) if p + q < 8], key=lambda t: (max(t), t[0]+t[1]))
        for r in range(4):
            rd = reads(r+1) if r < 3 else []
            base = FB + 64*(r & 1); seen = set()
            for n, (p, q) in enumerate(order):
                k.wait(lg=[('cu', r, p), ('ch', r, q)])
                acc = AC + 4*(p+q)
                cin = "0" if (r == 0 and (p+q) not in seen) else q4(acc)
                seen.add(p+q)
                k.e(f"v_mfma_f32_16x16x32_bf16 {q4(acc)}, {q4(base+8*p)}, {q4(base+8*q+4)}, {cin}")
                if rd and n % 2 == 1 and n >= 3: rd.pop(0)(); self.now += 17
                else: self.fill(1, 17)
            while rd: rd.pop(0)()
        self.stamp()
        a, b = T[0], T[1]
        k.e(f"v_lshrrev_b32 v{a}, 4, v{vL}"); k.e(f"v_lshlrev_b32 v{a}, 8, v{a}")
        k.e(f"v_and_b32 v{b}, 15, v{vL}"); k.e(f"v_lshl_add_u32 v{a}, v{b}, 3, v{a}")
        k.e(f"s_add_u32 s{sT0}, s{sW8K}, {PB}"); k.e(f"v_add_u32 v{a}, s{sT0}, v{a}")
        k.e("s_nop 1")
        for nt in range(8):
            if nt and nt % 2 == 0: k.e(f"v_add_u32 v{a}, 0x800, v{a}")
            o = (nt & 1)*128
            k.lds(f"ds_write2_b64 v{a}, {pr(AC+4*nt)}, {pr(AC+4*nt+2)} offset0:{o} offset1:{o+16}")
        k.e(f"v_sub_u32 v{b}, 255, v0"); k.e(f"v_lshlrev_b32 v{a}, 5, v{b}"); k.e(f"v_add_u32 v{a}, {PB}, v{a}")
        k.e(f"v_lshrrev_b32 v{T[2]}, 3, v{b}"); k.e(f"v_lshlrev_b32 v{T[2]}, 8, v{T[2]}"); k.e(f"v_lshl_add_u32 v{b}, v{b}, 4, v{T[2]}")
        k.e(f"s_lshl_b32 s{sT0}, s{sDD}, 16"); k.e(f"s_and_b32 s{sT1}, s{sDD}, s{sMASK}")
        k.e(f"s_mul_i32 s{sA0}, s{sCP}, 12288"); k.e(f"s_add_u32 s{sA0}, s{sA0}, {YT_OFF}")
        E = 16
        for ch in range(2):
            u = UR + 4*ch
            for i in range(4):
                k.e(f"v_lshlrev_b32 v{E+8*ch+7-2*i}, 16, v{u+i}"); k.e(f"v_and_b32 v{E+8*ch+6-2*i}, s{sMASK}, v{u+i}")
        self.drain('wd')
        k.wait(lg='all'); k.e("s_barrier")
        R = AC
        for ch in range(2):
            for rh in range(2):
                for hf in range(2):
                    dd = R + 16*ch + 8*rh + 4*hf
                    k.lds(f"ds_read_b128 {q4(dd)}, v{a} offset:{(2*ch+rh)*8192 + 16*hf}", ('p', ch))
        self.fill(6, 300)
        G = UR
        for i in (3, 7, 10, 11): k.e(f"v_mov_b32 v{G+i}, s{sTAG}")
        for ch in range(2):
            k.wait(lg=('p', ch))
            y = R + 16*ch
            for i in range(0, 8, 2): k.e(f"v_pk_add_f32 {pr(y+i)}, {pr(y+i)}, {pr(y+8+i)}")
            for i in range(8): k.e(f"v_fmac_f32 v{y+i}, s{sT0 if ch == 0 else sT1}, v{E+8*ch+i}")
            for i in range(4): k.e(f"v_cvt_pk_bf16_f32 v{G+4*ch+i if i < 3 else G+8+ch}, v{y+2*i}, v{y+2*i+1}")
        for j in range(3): k.vmem(f"buffer_store_dwordx4 {q4(G+4*j)}, v{b}, {WS}, s{sA0} offen offset:{128*j} sc1", 'y')
        self.now += 200

    NPRE = 45
    def hload(self, n):
        ps, i = n // 14, n % 14
        f, d = self.hreg[n]
        va = vL16 if i < 4 else 16 + 2*0 + (0)
        vo = [vL16, self.HV, self.HV+1, self.HV+2][i // 4]
        return f"buffer_load_dwordx4 {f}[{d}:{d+3}], v{vo}, {WS}, s{sA4+ps} offen offset:{1024*(i%4)}{'' if self.P.get('x_nosc') else ' sc1'}"
    HV = 12
    def hl_task(self):
        k = self.k
        yield from self.seq(f"v_min_u32 v{T[3]}, 6, v{vL}", f"v_lshlrev_b32 v{T[3]}, 7, v{T[3]}",
                            *[f"v_add_u32 v{self.HV+i}, {4096*(i+1)}, v{vL16}" for i in range(3)])
        k.e(f"s_lshl_b32 s{sXO}, s{sMT}, 13"); k.e(f"s_and_b32 s{sA7}, s{sXCD}, 1"); yield
        k.e(f"s_lshl_b32 s{sA6}, s{sA7}, 12"); k.e(f"s_add_u32 s{sXO}, s{sXO}, s{sA6}"); yield
        k.e(f"s_mul_i32 s{sA6}, s{sWAVE}, {7*128}"); k.e(f"s_add_u32 s{sXO}, s{sXO}, s{sA6}"); yield
        k.e(f"s_add_u32 s{sXO}, s{sXO}, {HF}"); yield
        k.e(f"s_lshl_b32 s{sA6}, s{sA7}, 1"); k.e(f"s_lshr_b32 s{sA5}, s{sWAVE}, 1"); yield
        k.e(f"s_add_u32 s{sA6}, s{sA6}, s{sA5}"); k.e(f"s_lshl_b32 s{sA5}, s{sMT}, 2"); yield
        k.e(f"s_add_u32 s{sA6}, s{sA6}, s{sA5}"); k.e(f"s_lshl_b32 s{sA7}, s{sA7}, 2"); yield
        k.e(f"s_add_u32 s{sA7}, s{sA7}, s{sWAVE}"); k.e(f"s_mul_i32 s{sOKH}, s{sA7}, {14*1024}"); yield
        k.e(f"s_add_u32 s{sOKH}, s{sOKH}, {H_OFF}"); k.e(f"s_mov_b32 s{sA7}, s{sA6}"); yield
        k.e(f"s_xor_b32 s{sA4}, s{sA7}, 3"); k.e(f"s_xor_b32 s{sA5}, s{sA7}, 2"); yield
        k.e(f"s_xor_b32 s{sA6}, s{sA7}, 1"); yield
        for r in (sA4, sA5, sA6, sA7):
            k.e(f"s_mul_i32 s{r}, s{r}, {112*1024}"); k.e(f"s_add_u32 s{r}, s{r}, s{sOKH}"); yield
        yield ('t', self.hpoll_time)
        self.hpoll = f"buffer_load_dword v{vP}, v{T[3]}, {WS}, s{sXO} offen sc1"
        k.vmem(self.hpoll, 'hpoll')
        yield ('dt', self.P['poll_lat'])
        k.wait(vm='hpoll'); self.record_ok([vP], sOKH); yield
        self.hfree = [('a', 112+4*i) for i in range(26)] + [('a', 224+4*i) for i in range(8)] + [('v', 60+4*i) for i in range(9)]
        n = 0; n2 = self.P.get('h2', 0)
        while n < 56:
            if n2 and n == n2 - self.P.get('h2lead', 8): k.vmem(self.hpoll, 'hpoll2')
            if n2 and n == n2 and 'g2_started' not in self.events:
                def body(e, lab, n2=n2):
                    sk = self.k.newlabel("h2skip")
                    e(f"s_waitcnt vmcnt({self.P.get('h2lead', 8)})")
                    self.cmpall(e, [vP]); e(f"s_cbranch_vccnz {sk}")
                    e(f"s_mov_b32 s{sOKH}, 0")
                    for m in range(n2): e(self.hload(m))
                    lab(sk)
                assert k._n_after(k.vm, 'hpoll2') is None or k._n_after(k.vm, 'hpoll2') >= self.P.get('h2lead', 8)
                self.redo("h2", sOKH, body)
            if not self.hfree:
                yield ('dt', 1); continue
            self.hreg[n] = self.hfree.pop(0)
            k.vmem(self.hload(n), ('hl', n))
            n += 1
            yield ('dt', self.P.get('hl_pace', 66))
    EA = 32
    def fin_task(self):
        k = self.k; a, b, c = T[4], T[5], T[6]
        YL = 112; BASE = 96
        assert self.done('hflag') and self.done('wd')
        k.e(f"s_and_b32 s{sA2}, s{sXCD}, 1"); k.e(f"s_lshl_b32 s{sA3}, s{sMT}, 1"); yield
        k.e(f"s_add_u32 s{sA2}, s{sA2}, s{sA3}"); k.e(f"s_lshl_b32 s{sA3}, s{sA2}, 1"); yield
        k.e(f"s_lshr_b32 s{sA0}, s{sWAVE}, 1"); k.e(f"s_add_u32 s{sA3}, s{sA3}, s{sA0}"); yield
        k.e(f"s_lshl_b32 s{sDO}, s{sA3}, 15"); k.e(f"s_lshl_b32 s{sA3}, s{sDT}, 7"); yield
        k.e(f"s_add_u32 s{sDO}, s{sDO}, s{sA3}"); k.e(f"s_and_b32 s{sA1}, s{sWAVE}, 1"); yield
        k.e(f"s_lshl_b32 s{sA1}, s{sA1}, 6"); k.e(f"s_add_u32 s{sDO}, s{sDO}, s{sA1}"); yield
        yield from self.seq(f"v_and_b32 v{c}, 31, v{vL}", f"v_lshlrev_b32 v16, 10, v{c}", f"v_lshrrev_b32 v{c}, 5, v{vL}", f"v_lshl_add_u32 v16, v{c}, 4, v16")
        for i in range(8):
            yield from self.seq(f"v_accvgpr_read_b32 v{BASE+2*i+1}, a{XK+i}", f"v_lshlrev_b32 v{BASE+2*i}, 16, v{BASE+2*i+1}",
                                f"v_and_b32 v{BASE+2*i+1}, s{sMASK}, v{BASE+2*i+1}")
        yield from self.seq(f"v_mul_f32 v17, v{vRSTD}, v{vRSTD}",
                            f"v_lshrrev_b32 v{a}, 3, v0", f"v_mul_u32_u24 v{b}, 12288, v{a}", f"v_and_b32 v{c}, 7, v0", f"v_lshl_add_u32 v{b}, v{c}, 4, v{b}",
                            f"v_and_b32 v19, 1, v{a}", f"v_lshlrev_b32 v19, 2, v19", f"v_xor_b32 v19, v19, v{c}", f"v_lshlrev_b32 v19, 4, v19",
                            f"v_lshl_add_u32 v19, v{a}, 8, v19", f"v_add_u32 v19, {YT_L}, v19", f"v_bfe_u32 v{c}, v{vL}, 3, 1")
        k.e(f"s_mul_i32 s{sA2}, s{sA2}, 384"); k.e(f"s_mul_i32 s{sA3}, s{sDT}, {32*12288}"); yield
        k.e(f"s_add_u32 s{sA2}, s{sA2}, s{sA3}"); k.e(f"s_add_u32 s{sA2}, s{sA2}, {YT_OFF}"); yield
        yield from self.seq(f"v_xor_b32 v{c}, s{sA0}, v{c}", f"v_lshl_add_u32 v{c}, v{c}, 6, v{vYL}")
        k.e(f"s_lshl_b32 s{sA1}, s{sA1}, 6"); k.e(f"s_add_u32 s{sA1}, s{sA1}, {YT_L}"); yield
        k.e(f"v_add_u32 v{c}, s{sA1}, v{c}")
        self.fin_tr = c
        yield ('t', self.g2_t0 + self.P['yld'])
        self.yl = [f"buffer_load_dwordx4 {q4(YL+4*j)}, v{b}, {WS}, s{sA2} offen offset:{128*j} sc1" for j in range(3)]
        self.ychk = [YL+3, YL+7, YL+11]
        self.yw = [f"v_mov_b32 v{YL+3}, v{YL+8}", f"v_mov_b32 v{YL+7}, v{YL+9}", f"ds_write_b128 v19, {q4(YL)}", f"ds_write_b128 v19, {q4(YL+4)} offset:128"]
        for l in self.yl: k.vmem(l, 'yl')
        yield ('dt', self.P['ld_lat'])
        k.wait(vm='yl'); self.record_ok(self.ychk, sOKU); yield
        for s in self.yw:
            if s.startswith("ds_"): k.lds(s, 'yw')
            else: k.e(s)
            yield
    def xsend_task(self):
        k = self.k; A = 128; a = T[0]
        for j in range(4):
            k.lds(f"ds_write_b128 v{self.EA}, {q4(A + 48 + 4*j)} offset:{EXA + 1024*j}", 'exw'); yield
        k.e(f"s_mul_i32 s{sT0}, s{sWAVE}, 12288"); k.e(f"v_add_u32 v{a}, s{sT0}, v{vL16}")
        yield ('dt', 130)
        k.wait(lg='all'); k.e("s_barrier"); yield
        dst = [A, A+16, A+48]
        for s_ in (1, 2, 0):
            for j in range(4):
                k.lds(f"ds_read_b128 {q4(dst[s_]+4*j)}, v{a} offset:{EXA + 4096*s_ + 1024*j}", ('exa', s_)); yield
        k.e(f"s_lshl_b32 s{sOKC}, s2, 14"); k.e(f"s_add_u32 s{sOKC}, s{sOKC}, s{sW4K}"); yield
        k.e(f"s_add_u32 s{sOKC}, s{sOKC}, {XB_OFF}"); yield
        K = A + 32
        for s_ in (1, 2, 0):
            k.wait(lg=('exa', s_))
            for i in range(16):
                k.e(f"v_add_f32 v{K+i}, v{K+i}, v{dst[s_]+i}"); yield
        slot = [0, 1, 2, 4, 5, 6, 8, 9]
        yield from self.seq(*[f"v_cvt_pk_bf16_f32 v{A+slot[i]}, v{K+2*i}, v{K+2*i+1}" for i in range(8)])
        yield from self.seq(*[f"v_mov_b32 v{A+i}, s{sTAG}" for i in (3, 7, 10, 11)])
        for j in range(3): k.vmem(f"buffer_store_dwordx4 {q4(A+4*j)}, v{vL16}, {WS}, s{sOKC} offen offset:{1024*j} sc1", 'xs')
        print("xsend at", self.now - self.g2_t0)
        k.e(f"s_xor_b32 s{sOKC}, s{sOKC}, 0x4000")
        yield ('t', self.g2_t0 + self.P['xrecv'])
        self.xl = [f"buffer_load_dwordx4 {q4(A+16+4*j)}, v{vL16}, {WS}, s{sOKC} offen offset:{1024*j} sc1" for j in range(3)]
        for l in self.xl: k.vmem(l, 'xr')
    def g2(self):
        k = self.k; EA = self.EA
        self.drain('wd')
        hl = [t for t in self.tasks if t['name'] == 'hl'][0]
        while len(self.hreg) < 1: self._step(hl)
        for x in (1, 2, 3):
            k.e(f"s_xor_b32 s{sT0}, s{sWAVE}, {x}"); k.e(f"s_mul_i32 s{sT0}, s{sT0}, 12288"); k.e(f"s_add_u32 s{sT0}, s{sT0}, {(x-1)*4096}")
            k.e(f"v_add_u32 v{EA+x-1}, s{sT0}, v{vL16}")
        npre = len(self.hreg); print("h prefetched:", npre)
        def body(e, lab):
            self.spin(e, lab, "h", [self.hpoll], [vP])
            for n in range(npre): e(self.hload(n))
        if self.P.get('x_delay'):
            for _ in range(self.P['x_delay']): k.e("s_sleep 64")
        self.redo("h", sOKH, body)
        k.vm = [('hl', n) for n in range(npre)]
        k.wait(lg='all')
        self.stamp()
        self.g2_t0 = self.now; self.events.add('g2_started')
        for n in range(56):
            ps, i = n // 14, n % 14
            if n % 7 == 0: self.stamp('g2')
            while n not in self.hreg: self._step(hl)
            k.wait(vm=('hl', n))
            f, h = self.hreg[n]
            for role in (1, 0):
                acc = 128 + 32*ps + 16*role
                cin = "0" if i == 0 else f"v[{acc}:{acc+15}]"
                k.e(f"v_mfma_f32_32x32x16_bf16 v[{acc}:{acc+15}], a[{8*i+4*role}:{8*i+4*role+3}], {f}[{h}:{h+3}], {cin}")
                used = 0
                if role == 0: self.hfree.append((f, h))
                if ps == 2 and i == self.P['xs_at'] and role == 0: self.add('xsend', self.xsend_task(), 4)
                if ps % 2 == 1 and 4 <= i < 12 and role == 0:
                    z = i - 4; rl = z // 4; j = z % 4
                    ex = EXA if ps == 1 else EXB
                    k.lds(f"ds_write_b128 v{EA + (1 if rl == 0 else 2)}, {q4(128 + 32*(ps-1) + 16*rl + 4*j)} offset:{ex + 1024*j}", 'exw'); used = 1
                self.fill(self.P['cap'] + 1 - used, 33)
        self.stamp(); self.stamp('g2')
        self.drain('xsend', 'fin')
        YTr = 24; BASE = 96; YU = 112; XC = 60; AC = 192; RX = 144; RU = 160
        a = T[0]
        for i in range(11): k.e(f"v_sub_f32 v{XC+i}, v{BASE+i}, v{vMEAN}")
        for j in range(4): k.lds(f"ds_write_b128 v{EA}, {q4(AC + 48 + 4*j)} offset:{EXB + 1024*j}", 'exw')
        for i in range(11, 16): k.e(f"v_sub_f32 v{XC+i}, v{BASE+i}, v{vMEAN}")
        def ybody(e, lab):
            e("s_waitcnt lgkmcnt(0)")
            self.spin(e, lab, "y", self.yl, self.ychk)
            for s in self.yw: e(s)
        self.redo("y", sOKU, ybody)
        k.wait(lg='all'); k.e("s_barrier")
        self.stamp('g2')
        for j in range(4): k.lds(f"ds_read_b64_tr_b16 {pr(YTr+2*j)}, v{self.fin_tr} offset:{1024*j}", 'yt')
        dst = [AC+48, AC, AC+16]
        for s_ in (1, 2, 0):
            for j in range(4): k.lds(f"ds_read_b128 {q4(dst[s_]+4*j)}, v{a} offset:{EXB + 4096*s_ + 1024*j}", ('ex', s_))
        for i in range(16): k.e(f"v_mul_f32 v{XC+i}, v{vRSTD}, v{XC+i}")
        k.wait(vm='xr')
        self.retry("xr", self.xl, [RX+3, RX+7, RX+11])
        self.stamp('g2')
        acc = AC + 32
        for i, sl in enumerate([0, 1, 2, 4, 5, 6, 8, 9]):
            k.e(f"v_lshlrev_b32 v{RU+2*i}, 16, v{RX+sl}"); k.e(f"v_and_b32 v{RU+2*i+1}, s{sMASK}, v{RX+sl}")
        for i in range(0, 16, 2): k.e(f"v_pk_add_f32 {pr(acc+i)}, {pr(acc+i)}, {pr(RU+i)}")
        k.wait(lg='yt')
        for i in range(8):
            k.e(f"v_lshlrev_b32 v{YU+2*i}, 16, v{YTr+i}"); k.e(f"v_and_b32 v{YU+2*i+1}, s{sMASK}, v{YTr+i}")
        for i in range(0, 16, 2): k.e(f"v_pk_fma_f32 {pr(BASE+i)}, {pr(XC+i)}, {pr(YU+i)}, {pr(BASE+i)}")
        for s_ in (1, 2, 0):
            k.wait(lg=('ex', s_))
            for i in range(0, 16, 2): k.e(f"v_pk_add_f32 {pr(acc+i)}, {pr(acc+i)}, {pr(dst[s_]+i)}")
        for i in range(16): k.e(f"v_fmac_f32 v{BASE+i}, v17, v{acc+i}")
        O = 112
        for i in range(8): k.e(f"v_cvt_pk_bf16_f32 v{O+i}, v{BASE+2*i}, v{BASE+2*i+1}")
        k.e("s_nop 1")
        for pp in range(2):
            k.e(f"v_permlane32_swap_b32 v{O+4*pp}, v{O+4*pp+2}"); k.e(f"v_permlane32_swap_b32 v{O+4*pp+1}, v{O+4*pp+3}")
        for pp in range(2):
            k.vmem(f"buffer_store_dwordx4 {q4(O+4*pp)}, v16, {OUT}, s{sDO} offen offset:{32*pp}{' sc1' if self.P['outsc'] else ''}", 'out')

    def dump_stamps(self):
        if not self.stamps: return
        k = self.k
        k.wait(vm='all'); self.stamp(self.P.get('sgrp', 'main'))
        k.e(f"s_lshl_b32 s{sT0}, s2, 2"); k.e(f"s_add_u32 s{sT0}, s{sT0}, s{sWAVE}"); k.e(f"s_lshl_b32 s{sT0}, s{sT0}, 6")
        k.e(f"s_add_u32 s{sT0}, s{sT0}, {TS_OFF}")
        k.e("v_mov_b32 v5, 0")
        k.e("s_memrealtime s[100:101]"); k.e("s_waitcnt lgkmcnt(0)")
        srcs = [6] + [STAMP0+2*i for i in range(self.nst)]
        for i, r in list(enumerate(srcs)) + [(13, sOKH), (14, 4), (15, 100)]:
            k.e(f"v_mov_b32 v6, s{r}"); k.e(f"buffer_store_dword v6, v5, {WS}, s{sT0} offen offset:{4*i}")
        k.e("s_waitcnt vmcnt(0)")

    def rest(self):
        self.hreg = {}
        self.hpoll_time = self.now + self.P['hpoll']
        self.add('hl', self.after('conv_start', self.hl_task()), 3)
        self.conv()
        self.stamp()
        self.add('fin', self.fin_task(), 5)
        self.g2()
        self.dump_stamps()
        self.k.e("s_endpgm")

    def build(self):
        k = self.k; P = self.P
        self.setup_pre()
        k.e(f"s_cmp_ge_u32 s{sIDX}, 28"); k.e("s_cbranch_scc1 L_aux")
        self.g1_addr_dma(); self.rot_setup()
        self.setup_srd1()
        for _ in self.g1_dma(0): pass
        self.setup_srd2()
        self.g1_addr_rd(); self.wd_addr(); self.conv_addr(); self.prep_addr(UR+4)
        for _ in self.g1_dma(1): pass
        self.tag_ready()
        self.stamp()
        self.wd_next = 0
        self.add('g1dma', self.g1_dma(2, 60), 0)
        self.add('prep', self.at(P['prep_start'], self.prep_full(FREE, 'bar_after_pw')), 2)
        self.ut_time = P['ut_time']
        for b in (MISC + 8192, MISC): self.add('wd', self.after(('bar', 5), self.after('bar_after_prd', self.wd_slot_task(b))), 6)
        self.add('wd', self.after(('bar', 5), self.wd_slot_task(ZSLOT)), 6)
        for b in (0, 8192, 53248): self.add('wd', self.after(('bar', 6), self.wd_slot_task(b)), 6)
        for b in (16384, 24576): self.add('wd', self.after(('bar', 7), self.wd_slot_task(b)), 6)
        self.add('corr', self.after(('bar', 5), self.corr_task()), 1)
        self.add('hc', self.after('corr_issued', self.hc_task()), 3)
        self.add('u', self.after('hc_done', self.after('prep_done', self.u_task(('bar', 6)))), 3)
        self.g1_loop()
        assert 'prep_done' in self.events
        self.stamp()
        self.g1_epilogue()
        self.h_time = self.now
        self.add('hflag', self.hflag_task(), 1)
        self.stamp()
        self.rest()
        k.label("L_aux")
        k.vm = []; k.lg = []; self.reset_sched(); self.nst = 0
        PA = 14
        self.ut_time = 0
        self.aux_addr()
        self.setup_srd1(); self.setup_srd2()
        al = self.add('al', self.aux_loads(40), 1)
        SAVE = self.WL + 4*7
        for _ in range(P.get('aux_first', 4)): self._step(al)
        self.prep_addr(SAVE - 4)
        for _ in self.prep_loads(PA): pass
        for _ in range(6): self._step(al)
        self.tag_ready()
        self.stamp()
        self.add('prep', self.prep_task(PA, 'pbar'), 2)
        while 'prep_written' not in self.events: self.fill(5, 20)
        k.wait(lg='all'); k.e("s_barrier"); self.events.add('pbar')
        P_ut = [t for t in self.tasks if t['name'] == 'prep'][0]
        self.ut_time = 1 << 30
        while P_ut['wake'] != ('t', 1 << 30): self.fill(5, 20)
        assert len(self.aorder) <= 44
        self.drain('prep')
        self.stamp('g1')
        k.e("s_nop 1")
        self.aux_compute(al)
        self.stamp()
        if P.get('touch', 1):
            for _ in self.touch(UR): pass
        self.aux_final_inputs()
        self.wd_addr(); self.conv_addr()
        self.events |= {'go'}
        self.add('hc', self.hc_task(), 3); self.drain('hc')
        k.wait(lg='all'); k.e("s_barrier")
        self.wd_next = 0
        for b in (0, 8192, 16384, 24576, 53248): self.add('wd', self.wd_slot_task(b), 6)
        while not self.done('wd'): self.fill(8, 100)
        self.aux_stats()
        self.gen_update()
        self.add('u', self.u_task('go'), 3)
        self.stamp()
        self.rest()
        k.lines += self.tail
        k.label("L_end")
        return k.text()

def full(body):
    ref = open(f"cdna_kernels/{NAME}.s.ref").read()
    pre, rest = ref.split(NAME + "_kernel:\n", 1)
    post = rest[rest.index("s_endpgm"):]
    pre = pre.replace("grid=(4096,1,1) block=(256,1,1) lds=0", f"grid=(256,1,1) block=(256,1,1) lds={LDS_SIZE}")
    post = post.replace("next_free_vgpr 256", "next_free_vgpr 512")
    return pre + NAME + "_kernel:\n" + body + "\n" + post

if __name__ == "__main__":
    stamps = "--stamps" in sys.argv
    P = {}
    for a in sys.argv[2:]:
        if "=" in a:
            kk, v = a.split("="); P[kk] = int(v) if v.lstrip('-').isdigit() else v
    g = Gen(stamps, P)
    body = g.build()
    errs = check(body)
    for e in errs: print("HAZARD:", e)
    open(sys.argv[1], "w").write(full(body))
    print("wrote", sys.argv[1], len(body.split("\n")), "lines")
```
